```python
import torch

def _softmax(x, axis=-1):
    return torch.softmax(x, dim=axis)
def _gelu(x):
    return torch.nn.functional.gelu(x, approximate="tanh")
def _silu(x):
    return torch.nn.functional.silu(x)
def _sigmoid(x):
    return torch.sigmoid(x)
def _layernorm(x, axis=-1, eps=1e-5):
    m = x.mean(dim=axis, keepdim=True)
    v = x.var(dim=axis, keepdim=True, unbiased=False)
    return (x - m) / torch.sqrt(v + eps)
def _scatter_add(tgt, idx, src, axis=0):
    return tgt.clone().index_add_(axis, idx, src)
def _segment_sum(src, seg, n):
    out = torch.zeros((n,) + src.shape[1:], dtype=src.dtype)
    return out.index_add_(0, seg, src)
def _pad(x, pw):
    flat = tuple(v for pair in reversed(pw) for v in pair)
    return torch.nn.functional.pad(x, flat)

kernel_name = 'parallel_sum__compressed_kv_cla__dense_activation_silu__prompt'

def setup_inputs():

    _w = (lambda a: (lambda t: t.to(torch.bfloat16) if t.is_floating_point() else t)(torch.as_tensor(a)))
    def _A_setup():
        B, H, Sq, Sk, D, M = 1, 32, 2048, 2048, 128, 640
        Dc = 4 * D
        return {
            "x": _w((lambda *s: torch.randn(*s, dtype=torch.bfloat16) * 0.05)(B, Sq, M)),
            "c_kv": _w((lambda *s: torch.randn(*s, dtype=torch.bfloat16) * 0.4)(B, Sk, Dc)),
            "w_q": _w((lambda *s: torch.randn(*s, dtype=torch.bfloat16) * 3.2)(M, H, D) * (M ** -0.5)),
            "w_uk": _w((lambda *s: torch.randn(*s, dtype=torch.bfloat16) * 3.2)(Dc, H, D) * (Dc ** -0.5)),
            "w_uv": _w((lambda *s: torch.randn(*s, dtype=torch.bfloat16) * 0.4)(Dc, H, D) * (Dc ** -0.5)),
            "w_o": _w((lambda *s: torch.randn(*s, dtype=torch.bfloat16) * 0.4)(H, D, M) * ((H * D) ** -0.5)),
        }
    _A_in = _A_setup()

    def _B_setup():
        B, S, D, F = 1, 2048, 640, 1728
        return {
            "x": _w((lambda *s: torch.randn(*s, dtype=torch.bfloat16) * 0.05)(B, S, D)),
            "w1": _w((lambda *s: torch.randn(*s, dtype=torch.bfloat16) * 0.8)(D, F) * (D ** -0.5)),
            "w2": _w((lambda *s: torch.randn(*s, dtype=torch.bfloat16) * 0.1)(F, D) * (F ** -0.5)),
        }
    _B_in = _B_setup()

    return {
        "A_x": _A_in["x"],
        "A_c_kv": _A_in["c_kv"],
        "A_w_q": _A_in["w_q"],
        "A_w_uk": _A_in["w_uk"],
        "A_w_uv": _A_in["w_uv"],
        "A_w_o": _A_in["w_o"],
        "B_x": _B_in["x"],
        "B_w1": _B_in["w1"],
        "B_w2": _B_in["w2"],
    }

def reference(A_x, A_c_kv, A_w_q, A_w_uk, A_w_uv, A_w_o, B_x, B_w1, B_w2):
    def _A_ref(x, c_kv, w_q, w_uk, w_uv, w_o):
        B, Sq, M = x.shape[0], x.shape[1], x.shape[2]
        Sk = c_kv.shape[1]
        H, D = w_q.shape[1], w_q.shape[2]
        q = torch.einsum("bqm,mhd->bhqd", x, w_q)
        k = torch.einsum("bkc,chd->bhkd", c_kv, w_uk)
        v = torch.einsum("bkc,chd->bhkd", c_kv, w_uv)
        scores = torch.einsum("bhqd,bhkd->bhqk", q, k) * (D ** -0.5)
        off = Sk - Sq
        qi = torch.arange(Sq)[:, None]
        kj = torch.arange(Sk)[None, :]
        cmask = kj <= (qi + off)
        scores = torch.where(cmask[None, None], scores, -1e9)
        p = _softmax(scores, axis=-1)
        ctx = torch.einsum("bhqk,bhkd->bhqd", p, v)
        return torch.einsum("bhqd,hdm->bqm", ctx, w_o)

    def _B_ref(x, w1, w2):
        h = torch.einsum("bsd,df->bsf", x, w1)
        h = _silu(h)
        out = torch.einsum("bsf,fd->bsd", h, w2)
        return out

    x = A_x
    xn = _layernorm(x, axis=-1)
    return x + _A_ref(xn, A_c_kv, A_w_q, A_w_uk, A_w_uv, A_w_o) + _B_ref(xn, B_w1, B_w2)
```

```python
import os
from common import *

VA_CK = 2; VA_W = 6; VA_T = 10; VA_P = 18; VA_ST = 24; VA_WD = 25; VA_WP = 30; VA_WS = 31
WF = 32; PK = 64; ACCA = 128; ACCB = 64
LNA = 64; LNR = 68; LNX = 80; LNT = 104; WTR = 64
STG = (2, 18)
VB_HD = 25
VB_HT = (22, 23, 29, 30)
WT_LDS = 128 * 1024
SC1 = 'sc1'
W_REG = [0, 1, 0, 1, 3, 0, 2, 1]
P_REG = [1, 2, 3, 4, 2, 3, 4, 2]
BQ = [0, 96*1024, 32*1024, 0, 96*1024]
BH = [64*1024, 80*1024, 128*1024, 64*1024, 80*1024]
WT_S = (56, 68); WT_S2 = (64, 65); S_WTL = 74
QSCALE = 0.12751743082459868

def acca(cb, rb): return ACCA + (cb * 4 + rb) * 4
def accb(cb, rb): return ACCB + (cb * 4 + rb) * 4
def qreg(rb, ds): return accb(4 + 2*ds, rb)
def ck(rb, s): return (s * 4 + rb) * 4

def setup(b):
    e = b.e
    e('v_and_b32 v32, 15, v0')
    e('v_lshrrev_b32 v33, 4, v0')
    e('v_bfe_u32 v34, v0, 2, 2')
    e('v_and_b32 v35, 3, v0')
    e(f's_lshl_b32 s{S_T}, s{S_P}, 8')
    e(f's_lshl_b32 s{S_T+1}, s{S_W}, 6')
    e(f's_add_u32 s{S_T}, s{S_T}, s{S_T+1}')
    e('v_lshrrev_b32 v36, 3, v0')
    e(f'v_add_u32 v36, s{S_T}, v36')
    e(f'v_lshlrev_b32 v36, 10, v36')
    e('v_and_b32 v37, 7, v0')
    e('v_xor_b32 v37, v37, v33')
    e(f'v_lshl_add_u32 v{VA_CK}, v37, 4, v36')
    e(f'v_xor_b32 v{VA_CK+1}, 64, v{VA_CK}')
    e(f'v_add_u32 v{VA_CK+2}, {2*7168}, v{VA_CK}')
    e(f'v_add_u32 v{VA_CK+3}, {3*7168}, v{VA_CK+1}')
    e(f'v_add_u32 v{VA_CK+1}, {1*7168}, v{VA_CK+1}')
    V = VA_W
    e('v_bfe_u32 v36, v0, 1, 3')
    e('v_xor_b32 v36, v36, v33')
    e('v_lshlrev_b32 v37, 13, v33')
    e('v_lshl_add_u32 v37, v36, 5, v37')
    e('v_and_b32 v38, 1, v0')
    e('v_lshl_add_u32 v37, v38, 4, v37')
    e(f's_lshl_b32 s{S_T}, s{S_H}, 8')
    e(f's_lshl_b32 s{S_T+1}, s{S_W}, 17')
    e(f's_add_u32 s{S_T}, s{S_T}, s{S_T+1}')
    e(f'v_add_u32 v{V}, s{S_T}, v37')
    e(f'v_xor_b32 v{V+2}, 128, v{V}')
    e(f'v_add_u32 v{V+1}, {4*8192 - 1024}, v{V}')
    e(f'v_add_u32 v{V+3}, {3*(4*8192 - 1024)}, v{V+2}')
    e(f'v_add_u32 v{V+2}, {2*(4*8192 - 1024)}, v{V+2}')

def setup_late(b):
    e = b.e
    e('v_lshrrev_b32 v36, 1, v32')
    e('v_xor_b32 v36, v36, v33')
    e('v_lshlrev_b32 v36, 4, v36')
    e('v_lshl_add_u32 v36, v32, 7, v36')
    e(f'v_add_u32 v{VA_P}, s{S_W8K}, v36')
    e(f'v_xor_b32 v{VA_P+1}, 64, v{VA_P}')
    for k in (1, 2):
        e(f'v_add_u32 v{VA_P+2*k}, {k*0x10000}, v{VA_P}')
        e(f'v_add_u32 v{VA_P+2*k+1}, {k*0x10000}, v{VA_P+1}')
    e('v_lshl_add_u32 v38, v33, 3, v34')
    e('v_lshlrev_b32 v38, 8, v38')
    e('v_lshl_add_u32 v38, v35, 3, v38')
    e('v_and_b32 v36, 1, v33')
    e('v_lshl_add_u32 v36, v36, 2, v34')
    e(f'v_lshl_add_u32 v{VA_T}, v36, 5, v38')
    for cb in range(1, 8): e(f'v_xor_b32 v{VA_T+cb}, {32*cb}, v{VA_T}')
    e(f's_lshl_b32 s{S_T}, s{S_H}, 3')
    e(f's_lshl_b32 s{S_T+1}, s{S_W}, 1')
    e(f's_add_u32 s{S_T}, s{S_T}, s{S_T+1}')
    e(f's_sub_u32 s{S_T+1}, 14, s{S_P}')
    e(f's_cmp_lt_u32 s{S_T}, 128')
    e(f's_cselect_b32 s{S_T+1}, s{S_P}, s{S_T+1}')
    e(f's_lshl_b32 s{S_T+1}, s{S_T+1}, 7')
    e(f's_add_u32 s{S_T}, s{S_T}, s{S_T+1}')
    e('v_lshrrev_b32 v36, 5, v0')
    e(f'v_add_u32 v36, s{S_T}, v36')
    e('v_and_b32 v37, 31, v0')
    e('v_mul_u32_u24 v38, 1280, v36')
    e(f'v_lshl_add_u32 v{LNA}, v37, 4, v38')
    e(f'v_mov_b32 v39, {OOB}')
    e(f'v_add_u32 v38, 1024, v{LNA}')
    e('v_cmp_gt_u32 s[62:63], 16, v37')
    e('v_lshrrev_b32 v40, 2, v37')
    e('v_lshrrev_b32 v41, 4, v36')
    e(f'v_cndmask_b32 v{LNA+1}, v39, v38, s[62:63]')
    e('v_mul_u32_u24 v38, 20, v41')
    e('v_add_u32 v38, v38, v40')
    e('v_lshlrev_b32 v38, 10, v38')
    e('v_and_b32 v40, 15, v36')
    e('v_lshl_add_u32 v38, v40, 4, v38')
    e(f'v_lshl_add_u32 v{LNA+2}, v35, 8, v38')
    e(f'v_add_u32 v38, {16384+XN_OFF}, v{LNA+2}')
    e(f'v_cndmask_b32 v{LNA+3}, v39, v38, s[62:63]')
    e(f's_lshl_b32 s{S_T}, s{S_H}, 20')
    e(f's_lshl_b32 s{S_T+1}, s{S_P}, 2')
    e(f's_add_u32 s{S_T+1}, s{S_T+1}, s{S_W}')
    e(f's_lshl_b32 s{S_T+1}, s{S_T+1}, 14')
    e(f's_add_u32 s{S_T}, s{S_T}, s{S_T+1}')
    e(f's_add_u32 s{S_T}, s{S_T}, {KV_OFF}')
    e(f'v_add_u32 v{VA_ST}, s{S_T}, v{V_L16}')
    for i in range(5):
        e(f'v_add_u32 v36, {64*i}, v0')
        e(f'v_mul_u32_u24 v37, 6554, v36')
        e(f'v_lshrrev_b32 v37, 16, v37')
        e(f'v_mul_u32_u24 v38, 10, v37')
        e(f'v_sub_u32 v36, v36, v38')
        e(f'v_mul_u32_u24 v37, 1280, v37')
        e(f'v_lshl_add_u32 v{VA_WD+i}, v36, 4, v37')
    e(f's_mul_i32 s{S_T}, s{S_W}, 5120')
    e(f's_add_u32 s{S_WTL}, s{S_T}, {WT_LDS}')
    e('v_lshl_add_u32 v36, v33, 2, v34')
    e('v_mul_u32_u24 v36, 160, v36')
    e(f'v_add_u32 v36, s{S_WTL}, v36')
    e(f'v_lshl_add_u32 v{VA_WP}, v35, 4, v36')
    e(f'v_lshl_add_u32 v{VA_WS}, v35, 3, v36')
    for rnd in range(2):
        R = WT_S[rnd]
        e(f's_lshl_b32 s51, s2, 2')
        e(f's_add_u32 s51, s51, s{S_W}')
        if rnd: e('s_add_u32 s51, s51, 1024')
        e('s_lshr_b32 s52, s51, 3')
        e('s_and_b32 s53, s51, 7')
        e('s_cmp_lt_u32 s52, 128')
        e(f's_cselect_b32 s{R}, s{S_WO}, s{S_W2}')
        e(f's_cselect_b32 s{R+1}, s{S_WO+1}, s{S_W2+1}')
        e(f's_cselect_b32 s{R+2}, s{S_WO+2}, s{S_W2+2}')
        e(f's_mov_b32 s{R+3}, 0x20000')
        e(f's_and_b32 s{R+4}, s52, 127')
        e(f's_mul_i32 s{R+4}, s{R+4}, {32*1280}')
        e('s_mul_i32 s3, s53, 160')
        e(f's_add_u32 s{R+4}, s{R+4}, s3')
        e(f's_mul_i32 s53, s53, {ZS}')
        e('s_add_u32 s53, s53, s52')
        e('s_mul_i32 s53, s53, 5120')
        e(f's_add_u32 s53, s53, {WT_OFF}')
        e('s_cmp_lt_u32 s51, 1456')
        e(f's_cselect_b32 s{R+4}, s{R+4}, {OOB}')
        e(f's_cselect_b32 s{R+5}, s53, {OOB}')
        e(f's_add_u32 s{WT_S2[rnd]}, s{R+5}, 4096')
    e(f's_lshl_b32 s51, s{S_P}, 2')
    e(f's_add_u32 s51, s51, s{S_W}')
    e(f's_lshl_b32 s51, s51, 1')
    e(f's_sub_u32 s52, 126, s51')
    e(f's_mul_i32 s{S_SX}, s51, 20480')
    e(f's_mul_i32 s{S_SX+2}, s52, 20480')
    e(f's_mul_i32 s{S_SZ}, s51, {ZS*1024}')
    e(f's_mul_i32 s{S_SZ+2}, s52, {ZS*1024}')
    e(f's_add_u32 s{S_SZ}, s{S_SZ}, {Z_OFF}')
    e(f's_add_u32 s{S_SZ+2}, s{S_SZ+2}, {Z_OFF}')
    for k in (0, 2):
        e(f's_add_u32 s{S_SX+k+1}, s{S_SX+k}, {20480}')
        e(f's_add_u32 s{S_SZ+k+1}, s{S_SZ+k}, {ZS*1024}')
    e(f'v_lshl_or_b32 v36, s{S_W}, 6, v0')
    e(f'v_cmp_eq_u32 vcc, 0, v36')
    e(f'v_mov_b32 v37, 0')
    e(f'v_mov_b32 v39, {OOB}')
    e(f'v_cndmask_b32 v{V_SIG}, v39, v37, vcc')

def ln_loads():
    return [mk(f'buffer_load_dwordx4 {vr(LNR)}, v{LNA}, {srd(S_X)}, 0 offen'),
            mk(f'buffer_load_dwordx4 {vr(LNR+4)}, v{LNA}, {srd(S_X)}, 0 offen offset:512'),
            mk(f'buffer_load_dwordx4 {vr(LNR+8)}, v{LNA+1}, {srd(S_X)}, 0 offen')]

def ln_compute():
    b = Block('ln'); e = b.e
    X = LNX; T = LNT
    def red32(v, t):
        for r in (8, 4, 2, 1):
            e(f'v_add_f32_dpp v{v}, v{v}, v{v} row_ror:{r} row_mask:0xf bank_mask:0xf')
        e(f'v_mov_b32 v{t}, v{v}')
        e(f'v_permlane16_swap_b32 v{v}, v{t}')
        e(f'v_add_f32 v{v}, v{v}, v{t}')
    for k in range(12):
        e(f'v_lshlrev_b32 v{X+2*k}, 16, v{LNR+k}')
        e(f'v_and_b32 v{X+2*k+1}, 0xffff0000, v{LNR+k}')
    e(f'v_add_f32 v{T}, v{X}, v{X+1}')
    e(f'v_add_f32 v{T+1}, v{X+2}, v{X+3}')
    for k in range(4, 24): e(f'v_add_f32 v{T+(k&1)}, v{T+(k&1)}, v{X+k}')
    e(f'v_add_f32 v{T}, v{T}, v{T+1}')
    red32(T, T+1)
    e(f'v_mul_f32 v{T}, {1.0/640!r}, v{T}')
    for k in range(16, 24): e(f'v_cndmask_b32 v{X+k}, v{T}, v{X+k}, s[62:63]')
    e(f'v_sub_f32 v{T+2}, v{X}, v{T}')
    e(f'v_mul_f32 v{T+1}, v{T+2}, v{T+2}')
    for k in range(1, 24):
        e(f'v_sub_f32 v{T+2+(k&1)}, v{X+k}, v{T}')
        e(f'v_fmac_f32 v{T+1}, v{T+2+(k&1)}, v{T+2+(k&1)}')
    red32(T+1, T+2)
    e(f'v_mul_f32 v{T+1}, {1.0/640!r}, v{T+1}')
    e(f'v_cvt_pk_bf16_f32 v{T}, v{T}, v{T+1}')
    e(f'v_and_b32 v{T+1}, 0xffff0000, v{T}')
    e(f'v_lshlrev_b32 v{T}, 16, v{T}')
    e(f'v_add_f32 v{T+1}, 0x3727c5ac, v{T+1}')
    e(f'v_cvt_pk_bf16_f32 v{T+1}, v{T+1}, v{T+1}')
    e(f'v_lshlrev_b32 v{T+1}, 16, v{T+1}')
    e(f'v_sqrt_f32 v{T+1}, v{T+1}')
    e(f'v_cvt_pk_bf16_f32 v{T+1}, v{T+1}, v{T+1}')
    e(f'v_lshlrev_b32 v{T+1}, 16, v{T+1}')
    e(f'v_rcp_f32 v{T+1}, v{T+1}')
    for k in range(12):
        a = X + 2*k
        e(f'v_sub_f32 v{a}, v{a}, v{T}')
        e(f'v_sub_f32 v{a+1}, v{a+1}, v{T}')
        e(f'v_cvt_pk_bf16_f32 v{a}, v{a}, v{a+1}')
        e(f'v_and_b32 v{a+1}, 0xffff0000, v{a}')
        e(f'v_lshlrev_b32 v{a}, 16, v{a}')
        e(f'v_mul_f32 v{a}, v{a}, v{T+1}')
        e(f'v_mul_f32 v{a+1}, v{a+1}, v{T+1}')
        e(f'v_cvt_pk_bf16_f32 v{LNR+k}, v{a}, v{a+1}')
    e(f's_mov_b32 s55, {XN_OFF}')
    e(f'buffer_store_dwordx4 {vr(LNR)}, v{LNA+2}, {srd(S_WS)}, s55 offen {SC1}', grp='xn')
    e(f's_mov_b32 s55, {XN_OFF+8192}')
    e(f'buffer_store_dwordx4 {vr(LNR+4)}, v{LNA+2}, {srd(S_WS)}, s55 offen {SC1}', grp='xn')
    e(f'buffer_store_dwordx4 {vr(LNR+8)}, v{LNA+3}, {srd(S_WS)}, 0 offen {SC1}', grp='xn')
    return b.ins

def wide_dma(sr, row0, lds, grp):
    L = []
    for hf in range(2):
        L.append(mk(f's_mov_b32 s54, {(row0 + hf*64)*8192}'))
        L.append(mk(f's_add_u32 m0, s{S_W4K}, {lds + hf*16384}'))
        for n in range(4):
            L.append(mk(f'buffer_load_dwordx4 v{VA_W+n}, {srd(sr)}, s54 offen offset:{n*1024} lds', grp=grp))
    return L
def w_dma(st): return wide_dma(S_WUK if st < 4 else S_WUV, (st & 3) * 128, W_REG[st] * 32768, f'w{st}')
def p_dma(q):
    L = []
    for hf in range(2):
        L.append(mk(f's_mov_b32 s54, {hf*32768 + q*128}'))
        L.append(mk(f's_add_u32 m0, s{S_W8K}, {P_REG[q]*32768 + hf*4096}'))
        for n in range(4):
            L.append(mk(f'buffer_load_dwordx4 v{VA_CK+n}, {srd(S_CKV)}, s54 offen offset:{n*1024} lds', grp=f'p{q}'))
    return L
def p_regs(q): return [f'a{ck(rb, 2*q+s2)+i}' for rb in range(4) for s2 in range(2) for i in range(4)]
def p_reads(q):
    R = P_REG[q]
    return [waitgrp(f'p{q}')] + [mk(f'ds_read_b128 {ar(ck(rb, 2*q+s2))}, v{VA_P + 2*(R>>1) + s2} offset:{(R&1)*32768 + rb*2048}')
            for s2 in range(2) for rb in range(4)]
def wt_dma(rnd):
    L = []; R = WT_S[rnd]
    for i in range(5):
        L.append(mk(f's_add_u32 m0, s{S_WTL}, {i*1024}'))
        L.append(mk(f'buffer_load_dwordx4 v{VA_WD+i}, s[{R}:{R+3}], s{R+4} offen lds', grp=f'wt{rnd}'))
    return L
def wt_reads():
    L = []
    for nb in range(5):
        for j2 in range(2):
            if nb < 4: L.append(mk(f'ds_read_b64_tr_b16 {vr(WTR+nb*4+j2*2, 2)}, v{VA_WP} offset:{j2*2560 + 64*(nb>>1) + 8*(nb&1)}'))
            else: L.append(mk(f'ds_read_b64_tr_b16 {vr(WTR+nb*4+j2*2, 2)}, v{VA_WS} offset:{j2*2560 + 128}'))
    return L
def wt_stores(rnd):
    L = []; R = WT_S[rnd]
    for nb in range(5):
        if nb < 4: L.append(mk(f'buffer_store_dwordx4 {vr(WTR+nb*4)}, v{V_L16}, {srd(S_WS)}, s{R+5} offen offset:{nb*1024} {SC1}', grp='wtst'))
        else: L.append(mk(f'buffer_store_dwordx4 {vr(WTR+nb*4)}, v{V_L16}, {srd(S_WS)}, s{WT_S2[rnd]} offen {SC1}', grp='wtst'))
    return L

class Img:
    def __init__(self): self.base = {}
    def reads(self, areg, base, nxt, buf, sstride):
        cur = self.base.get(areg, 0)
        rel = base - cur
        assert 0 <= rel and rel + 3*sstride + 1024 < 65536, (areg, base, cur)
        L = []
        for s4 in range(4):
            for j2 in range(2):
                L.append(mk(f'ds_read_b64_tr_b16 {vr(WF + buf*16 + s4*4 + j2*2, 2)}, v{areg} offset:{rel + s4*sstride + j2*1024}'))
        if nxt is not None and not (0 <= nxt - cur and nxt - cur + 3*sstride + 1024 < 65536):
            L.append(mk(f'v_add_u32 v{areg}, {hex((nxt - cur) & 0xffffffff)}, v{areg}'))
            self.base[areg] = nxt
        return L

def cvt4(t, d0, d1):
    return [mk(f'v_cvt_pk_bf16_f32 v{t}, v{d0}, v{d0+1}'), mk(f'v_cvt_pk_bf16_f32 v{t+1}, v{d0+2}, v{d0+3}'),
            mk(f'v_cvt_pk_bf16_f32 v{t+2}, v{d1}, v{d1+1}'), mk(f'v_cvt_pk_bf16_f32 v{t+3}, v{d1+2}, v{d1+3}')]
KVSC = os.environ.get('KVSC', 'sc1')
def kv_store(t, off):
    if KVSC == 'none': return [mk(f's_mov_b32 s55, {off}')]
    return [mk(f's_mov_b32 s55, {off}'), mk(f'buffer_store_dwordx4 {vr(t)}, v{VA_ST}, {srd(S_WS)}, s55 offen {KVSC}', grp='kv')]

class Str(Slots):
    def ch(self, items, k, minstep=0, before=None):
        k, left = self.chain(items, k, minstep); assert not left, (len(left), left[0].text)
        assert before is None or k < before, (k, before)
        return k
    def dma(self, items, k, step=4):
        bind(items)
        pend = []
        for it in items:
            if it.kind == 'vmem':
                for j, sc in enumerate(pend): self.put(max(k - len(pend) + j, 0), sc)
                pend = []
                self.put(k, it); k += step
            else: pend.append(it)
        assert not pend
        return k

def a_group(sl, st, cb, buf):
    for rb in range(4):
        for s4 in range(4):
            s = (st & 3) * 4 + s4
            d = vr(acca(cb, rb)); w = vr(WF + buf*16 + s4*4); a = ar(ck(rb, s))
            cin = '0' if s == 0 else d
            if st < 4: sl.add(f'{MF} {d}, {w}, {a}, {cin}')
            else: sl.add(f'{MF} {d}, {a}, {w}, {cin}')
def barrier_at(sl, k, grps):
    for g in grps: sl.put(k, waitgrp(g))
    sl.put(k, waitlds())
    sl.put(k, mk('s_barrier'))

def gen_common(b, img, hooks):
    e = b.e
    setup(b)
    b.waitlds()
    late = Block('late'); setup_late(late)
    lq = list(late.ins)
    burst = p_dma(0) + w_dma(0) + p_dma(1) + p_dma(2)
    bind(burst)
    for x in burst:
        b.add(x)
        if x.kind == 'vmem':
            n = 0
            while lq and (n < 7 or any(r in ('scc', 'vcc') for r in lq[0].rd)):
                b.add(lq.pop(0)); n += 1
    for x in lq: b.add(x)
    for x in p_reads(0) + p_reads(1): b.add(x)
    b.waitgrp('w0')
    b.waitlds()
    e('s_barrier')
    wreg = lambda st: W_REG[st] * 32768 if st < 8 else BQ[0]
    for x in img.reads(VA_T, wreg(0), wreg(1), 0, 8192): b.add(x)
    sl = Str(); base = {}; n = 0
    for st in range(7):
        base[st] = len(sl)
        for cb in range(8):
            buf = n & 1; k0 = len(sl)
            a_group(sl, st, cb, buf)
            nst, ncb = (st, cb + 1) if cb < 7 else (st + 1, 0)
            if ncb == 0: barrier_at(sl, k0, [f'w{nst}'] + (['xn'] if st == 3 else []))
            for j, x in enumerate(img.reads(VA_T + ncb, wreg(nst), wreg(nst + 1), buf ^ 1, 8192)): sl.put(k0 + j, x)
            n += 1
    base[7] = len(sl)
    end = lambda st: base[st] + 7*16 + 3
    sl.ch(p_reads(2), base[0] + 3*16 + 8, before=base[0] + 64)
    sl.ch(p_reads(3), base[0] + 7*16 + 8, before=base[1])
    k = sl.dma(w_dma(1) + p_dma(3) + ln_loads() + p_dma(4) + [waitreg(p_regs(2))] + p_dma(5), 2)
    k = sl.dma(w_dma(2) + [waitreg(p_regs(3))] + p_dma(6), max(k, end(0)))
    sl.ch(p_reads(4), base[1] + 4*16 + 8)
    sl.ch(p_reads(5), base[1] + 6*16 + 8, before=base[1] + 7*16)
    k = sl.dma([waitreg(p_regs(4))] + p_dma(7), max(k, base[1] + 5*16 + 4))
    sl.ch(p_reads(6), base[2] + 5*16 + 8)
    sl.ch(p_reads(7), base[2] + 6*16 + 8, before=base[2] + 7*16)
    k = sl.dma(w_dma(3) + w_dma(4), max(k, end(1)), 5)
    k = sl.dma(w_dma(5) + w_dma(6) + wt_dma(0), max(k, end(2)), 5)
    k = sl.dma(w_dma(7), max(k, end(3)), 5)
    sl.ch(ln_compute(), base[1] + 8, before=base[3] + 24)
    sl.ch(signal([mk(f's_lshl_b32 s53, s{S_P}, 2'), mk(f's_add_u32 s53, s53, {4*C_XN}')], STG[0]), end(3))
    k = 0; kst = base[3] + 2*16 + 12; stores = []
    for pair in range(4):
        for rb in range(4):
            f = pair*4 + rb
            k = sl.ch(cvt4(PK + f*4, acca(2*pair, rb), acca(2*pair+1, rb)), max(k, base[3] + (2*pair + 2)*16 + 4), before=base[4] + max(2*pair*16, 1))
            kst = sl.ch(kv_store(PK + f*4, (rb*4 + pair)*1024), max(kst, k + 1)) + 21
            stores.append(kst)
    assert kst - 21 < base[7], (kst, base)
    sl.dma(q_dma(0) + [x for rb in range(4) for x in x_loads(0, rb)], base[6] + 3, 5)
    k = sl.ch([waitgrp('wt0')] + wt_reads(), max(base[5] + 8, stores[5]))
    k = sl.ch([waitreg([f'v{WTR+i}' for i in range(20)])] + wt_dma(1), k + 6, 2)
    k = sl.ch(wt_stores(0), k + 1, 6)
    k = sl.ch([waitgrp('wt1')] + wt_reads(), max(k + 2, base[6] + 5*16 + 8), before=base[7])
    sl.ch([mk(f's_lshl_b32 s1, s{S_P}, 2'), mk(f's_add_u32 s1, s1, {4*C_XN}')] + poll_issue(1, STG[1]), base[5] + 4*16)
    sl.raw(base[6], poll_check('xn', 1, STG[1], 32))
    if 'common' in hooks: hooks['common'](sl, base)
    sl.emit(b)

def b_setup():
    L = []; e = lambda t: L.append(mk(t))
    V = VB_HD
    e(f'v_bfe_u32 v31, v{V_L16}, 7, 2')
    e(f'v_lshrrev_b32 v22, 9, v{V_L16}')
    e(f'v_lshl_add_u32 v31, v22, 3, v31')
    e(f'v_mul_u32_u24 v31, 3456, v31')
    e(f'v_bfe_u32 v22, v{V_L16}, 5, 2')
    e(f'v_lshrrev_b32 v23, 8, v{V_L16}')
    e(f'v_xor_b32 v22, v22, v23')
    e(f'v_lshl_add_u32 v31, v22, 5, v31')
    e(f'v_and_b32 v22, 16, v{V_L16}')
    e(f'v_add_u32 v31, v31, v22')
    e(f's_mul_i32 s51, s{S_W}, {32*3456}')
    e(f's_lshl_b32 s52, s{S_H}, 7')
    e(f's_add_u32 s51, s51, s52')
    e(f'v_add_u32 v{V}, s51, v31')
    for n in range(1, 4): e(f'v_add_u32 v{V+n}, {(4*(n&1) + 16*(n>>1))*3456 - n*1024}, v{V}')
    T = VB_HT
    e(f'v_bfe_u32 v31, v{V_L16}, 6, 2')
    e(f'v_bfe_u32 v{T[2]}, v{V_L16}, 8, 1')
    e(f'v_lshrrev_b32 v{T[3]}, 9, v{V_L16}')
    e(f'v_lshl_add_u32 v{T[0]}, v{T[2]}, 2, v31')
    e(f'v_lshl_add_u32 v{T[0]}, v{T[3]}, 4, v{T[0]}')
    e(f'v_lshlrev_b32 v{T[0]}, 7, v{T[0]}')
    e(f'v_bfe_u32 v{T[3]}, v{V_L16}, 4, 2')
    e(f'v_lshl_add_u32 v{T[0]}, v{T[3]}, 3, v{T[0]}')
    e(f'v_lshrrev_b32 v31, 1, v31')
    e(f'v_lshl_add_u32 v31, v{T[2]}, 1, v31')
    e(f'v_lshl_add_u32 v{T[0]}, v31, 5, v{T[0]}')
    e(f'v_add_u32 v{T[0]}, {BH[0]}, v{T[0]}')
    for cb in range(1, 4): e(f'v_xor_b32 v{T[cb]}, {32*cb}, v{T[0]}')
    return L

def q_dma(sg): return wide_dma(S_WQ, sg * 128, BQ[sg], f'b{sg}')
def h_dma(sg):
    L = [mk(f's_mov_b32 s54, {sg*128*3456}'), mk(f's_add_u32 m0, s{S_W4K}, {BH[sg]}')]
    for n in range(4):
        L.append(mk(f'buffer_load_dwordx4 v{VB_HD+n}, {srd(S_W1)}, s54 offen offset:{n*1024} lds', grp=f'b{sg}'))
    return L
def xreg(sg, rb, s4): return (sg & 1) * 64 + (rb * 4 + s4) * 4
def x_loads(sg, rb):
    L = [mk(f's_add_u32 s54, s{S_SX+rb}, {XN_OFF + sg*4096}')]
    for s4 in range(4):
        L.append(mk(f'buffer_load_dwordx4 {ar(xreg(sg, rb, s4))}, v{V_L16}, {srd(S_WS)}, s54 offen offset:{s4*1024} sc1', grp='x'))
    return L

def silu_ops(d, t):
    return [mk(f'v_mul_f32 v{t}, 0xbfb8aa3b, v{d}'), mk(f'v_exp_f32 v{t}, v{t}'), mk(f'v_add_f32 v{t}, 1.0, v{t}'),
            mk(f'v_rcp_f32 v{t}, v{t}'), mk(f'v_mul_f32 v{d}, v{d}, v{t}')]

def gen_var(b, img, withH, tag, hooks):
    for cb in range(4): img.base[VB_HT[cb]] = BH[0]
    sl = Str(); base = {}
    n = 56
    cbs = list(range(12)) if withH else list(range(4, 12))
    seq = [('A', 7, cb) for cb in range(8)] + [('B', sg, cb) for sg in range(5) for cb in cbs]
    def reads(ph, st, cb, buf):
        if ph == 'A': return img.reads(VA_T + cb, W_REG[7]*32768, BQ[0], buf, 8192)
        if cb >= 4: return img.reads(VA_T + cb - 4, BQ[st], BQ[st+1] if st < 4 else None, buf, 8192)
        return img.reads(VB_HT[cb], BH[st], BH[st+1] if st < 4 else None, buf, 4096)
    gstart = {}
    for i, (ph, st, cb) in enumerate(seq):
        buf = n & 1; k0 = len(sl)
        gstart[(ph, st, cb)] = k0
        base.setdefault((ph, st), k0)
        if ph == 'A': a_group(sl, st, cb, buf)
        else:
            for rb in range(4):
                for s4 in range(4):
                    d = vr(accb(cb, rb))
                    sl.add(f'{MF} {d}, {vr(WF + buf*16 + s4*4)}, {ar(xreg(st, rb, s4))}, {"0" if st == 0 and s4 == 0 else d}')
        if i + 1 < len(seq):
            nph, nst, ncb = seq[i + 1]
            if (nph, nst) != (ph, st):
                barrier_at(sl, k0, [f'b{nst}'] + (['kv', 'wtst'] if (ph, st) == ('B', 1) else []))
            for j, x in enumerate(reads(nph, nst, ncb, buf ^ 1)): sl.put(k0 + j, x)
        n += 1
    GL = len(cbs) * 16
    A7 = base[('A', 7)]; B = lambda sg: base[('B', sg)]
    endB = lambda sg: B(sg) + GL - 16 + 3
    k = sl.dma(q_dma(1), A7 + 2, 4)
    if withH:
        kk = sl.ch(b_setup(), A7 + 1)
        k = sl.dma(h_dma(0) + h_dma(1), max(k, kk + 3), 4)
    k = sl.dma([x for rb in range(4) for x in x_loads(1, rb)], k, 5)
    sl.ch(wt_stores(1), A7 + 9, 6)
    span = (gstart[('B', 0, 10)] - (A7 + 36)) // 16
    kst = A7 + 36
    for pair in range(4):
        for f in range(4):
            cb, kg = 2*pair + (f & 1), f >> 1
            t = STG[f & 1]
            kst = max(kst, A7 + (2*pair + 2)*16 + 4)
            dl = gstart[('B', 0, 4 + 2*pair)]
            kk = sl.ch(cvt4(t, acca(cb, 2*kg), acca(cb, 2*kg+1)) + kv_store(t, 524288 + (kg*8 + cb)*1024), min(kst, dl - 8*(4 - f)), before=dl)
            kst = max(kst + span, kk + 1)
    for sg in range(2, 5):
        k0 = (A7 + 7*16 + 3) if sg == 2 else endB(sg - 3)
        k = sl.dma(q_dma(sg) + (h_dma(sg) if withH else []), max(k, k0), 5)
        for rb in range(4):
            k = sl.dma(x_loads(sg, rb), max(k, B(sg - 2) + GL - 16 + 4*rb + 5), 4)
    sl.ch(signal([mk(f's_lshl_b32 s53, s{S_H}, 2'), mk(f's_add_u32 s53, s53, {4*C_KV}')], 31), endB(1))
    tail = []
    def run(items, k):
        nonlocal tail
        if tail: tail += items; return k
        k, left = sl.chain(items, k)
        tail += left
        return k
    k = 0
    work = []
    if withH:
        for pair in range(2):
            for rb in range(4):
                d0, d1 = accb(2*pair, rb), accb(2*pair+1, rb)
                L = []
                regs = [d0+i for i in range(4)] + [d1+i for i in range(4)]
                tm = [STG[1]+i for i in range(4)]
                for h4 in range(2):
                    ops = [silu_ops(regs[4*h4+i], tm[i]) for i in range(4)]
                    for j in range(5): L += [o[j] for o in ops]
                L += cvt4(STG[0], d0, d1)
                L += [mk(f's_lshl_b32 s55, s{S_H}, 11'), mk(f's_add_u32 s55, s55, s{S_SZ+rb}'), mk(f's_add_u32 s55, s55, {(128 + pair)*1024}'),
                      mk(f'buffer_store_dwordx4 {vr(STG[0])}, v{V_L16}, {srd(S_WS)}, s55 offen {SC1}', grp='h')]
                work.append((gstart[('B', 4, 2*pair+1)] + 16 + 4, L))
    qw = []
    for ds in range(4):
        for rb in range(4):
            d0, d1 = accb(4+2*ds, rb), accb(5+2*ds, rb)
            L = [mk(f'v_mul_f32 v{r}, {QSCALE!r}, v{r}') for r in [d0+i for i in range(4)] + [d1+i for i in range(4)]] + cvt4(d0, d0, d1)
            qw.append((gstart[('B', 4, 5+2*ds)] + 16 + 4, L))
    hooks.get('var', lambda *a: None)(sl, base, B, endB, GL)
    for st0, L in work + qw:
        k = run(L, min(max(k, st0), len(sl)))
    sl.emit(b)
    for x in tail: b.add(x)
```

```python
import re

RANGE = re.compile(r'^(-|\|)?(abs\()?([vas])\[(\d+):(\d+)\]\)?\|?$')
SINGLE = re.compile(r'^(-|\|)?(abs\()?([vas])(\d+)\)?\|?$')
TRANS = ('v_exp_f32', 'v_log_f32', 'v_rcp_f32', 'v_rsq_f32', 'v_sqrt_f32', 'v_sin_f32', 'v_cos_f32')

def regs_of(tok):
    tok = tok.strip()
    m = RANGE.match(tok)
    if m: return [f'{m.group(3)}{i}' for i in range(int(m.group(4)), int(m.group(5)) + 1)]
    m = SINGLE.match(tok)
    if m: return [f'{m.group(3)}{m.group(4)}']
    if tok in ('vcc', 'exec'): return [tok]
    if tok in ('vcc_lo', 'vcc_hi'): return ['vcc']
    if tok in ('exec_lo', 'exec_hi'): return ['exec']
    if tok == 'm0': return ['m0']
    return []

class I:
    __slots__ = ('text', 'op', 'kind', 'rd', 'wr', 'srcC', 'ab', 'grp', 'wvm', 'wlg', 'nop', 'pseudo', 'arg', 'sdata', 'dpp', 'noauto')
    def __init__(self, text, grp=None, pseudo=None, arg=None):
        self.text = text; self.grp = grp; self.pseudo = pseudo; self.arg = arg
        self.wvm = None; self.wlg = None; self.nop = 0
        self.rd = set(); self.wr = set(); self.srcC = set(); self.ab = set(); self.sdata = set()
        self.dpp = False; self.noauto = False
        if pseudo: self.op = pseudo; self.kind = 'pseudo'; return
        t = text.split(';')[0].strip()
        if t.endswith(':') or t.startswith('.'):
            self.op = 'label'; self.kind = 'label'; return
        sp = t.split(None, 1)
        op = sp[0]; self.op = op
        rest = sp[1] if len(sp) > 1 else ''
        ops = [x.strip() for x in rest.split(',')] if rest else []
        mods = ''
        if ops:
            l = ops[-1].split(None, 1)
            if len(l) > 1: ops[-1] = l[0]; mods = l[1]
        R = lambda k: set(regs_of(ops[k])) if k < len(ops) else set()
        allfrom = lambda k: set(r for o in ops[k:] for r in regs_of(o))
        if op.startswith('v_mfma'):
            self.kind = 'mfma'; self.wr = R(0); self.ab = R(1) | R(2); self.srcC = R(3); self.rd = self.ab | self.srcC
        elif op.startswith('ds_read'):
            self.kind = 'ds'; self.wr = R(0); self.rd = allfrom(1)
        elif op.startswith('ds_write'):
            self.kind = 'ds'; self.rd = allfrom(0)
        elif op.startswith('ds_'):
            self.kind = 'ds'; self.wr = R(0); self.rd = allfrom(1)
        elif op.startswith('buffer_load') or op.startswith('global_load'):
            self.kind = 'vmem'
            if re.search(r'\blds\b', mods): self.rd = allfrom(0) | {'m0'}
            else: self.wr = R(0); self.rd = allfrom(1)
        elif op.startswith('buffer_store'):
            self.kind = 'vmem'; self.rd = allfrom(0); self.sdata = R(0)
        elif op.startswith('global_store'):
            self.kind = 'vmem'; self.rd = allfrom(0); self.sdata = R(1)
        elif op.startswith('buffer_atomic') or op.startswith('global_atomic'):
            self.kind = 'vmem'; self.rd = allfrom(0)
            if 'sc0' in mods: self.wr = R(0)
        elif op in ('buffer_inv', 'buffer_wbl2'):
            self.kind = 'vmem'
        elif op.startswith('s_load') or op in ('s_memtime', 's_memrealtime'):
            self.kind = 'smem'; self.wr = R(0); self.rd = allfrom(1)
        elif op in ('s_waitcnt', 's_nop', 's_barrier', 's_sleep', 's_setprio', 's_endpgm', 's_branch'):
            self.kind = 'sctl'
        elif op.startswith('s_cbranch'):
            self.kind = 'sctl'
            self.rd = {'scc'} if 'scc' in op else ({'vcc'} if 'vcc' in op else {'exec'})
        elif op.startswith('s_cmp') or op.startswith('s_bitcmp'):
            self.kind = 'salu'; self.wr = {'scc'}; self.rd = allfrom(0)
        elif op.startswith('s_'):
            self.kind = 'salu'; self.wr = R(0); self.rd = allfrom(1)
            if op.startswith('s_cselect') or op.startswith('s_addc') or op.startswith('s_subb'): self.rd |= {'scc'}
            if 'saveexec' in op: self.wr |= {'exec'}; self.rd |= {'exec'}
            if not (op.startswith('s_mov') or op.startswith('s_cselect') or op.startswith('s_mul') or op.startswith('s_getpc') or op.startswith('s_movk')):
                self.wr |= {'scc'}
            if op in ('s_addk_i32',): self.rd |= R(0)
        elif op.startswith('v_'):
            self.kind = 'trans' if op.replace('_e32', '').replace('_e64', '') in TRANS else 'valu'
            self.wr = R(0); self.rd = allfrom(1)
            if op.startswith('v_cmpx'): self.wr |= {'exec'}
            if op.startswith('v_fmac') or op.startswith('v_dot2c') or op.startswith('v_writelane'): self.rd |= R(0)
            if op.startswith('v_permlane'): self.rd |= R(0); self.wr |= R(1)
            if op.startswith('v_add_co') or op.startswith('v_sub_co') or op.startswith('v_addc_co'):
                self.wr |= R(1); self.rd = allfrom(2)
            if 'dpp' in op or 'row_' in mods or 'quad_perm' in mods:
                self.dpp = True
                self.rd |= R(0)
        else:
            raise ValueError('unknown op: ' + text)

class Block:
    def __init__(self, name):
        self.name = name; self.ins = []
    def e(self, text, grp=None):
        for line in text.split('\n'):
            line = line.strip()
            if line: self.ins.append(I(line, grp=grp))
        return self.ins[-1]
    def add(self, ins): self.ins.append(ins)
    def mark(self, name): self.ins.append(I('', pseudo='mark', arg=name))
    def waitgrp(self, name, lag=0): self.ins.append(I('', pseudo='waitgrp', arg=(name, lag)))
    def waitall(self): self.ins.append(I('', pseudo='waitall'))
    def waitlds(self): self.ins.append(I('', pseudo='waitlds'))

def mk(text, grp=None): return I(text, grp=grp)
def mark(name): return I('', pseudo='mark', arg=name)
def waitgrp(name, lag=0): return I('', pseudo='waitgrp', arg=(name, lag))
def waitlds(): return I('', pseudo='waitlds')
def waitreg(regs):
    x = I('', pseudo='waitreg'); x.rd = set(regs); return x

WAITCNT = re.compile(r'(vmcnt|lgkmcnt)\((\d+)\)')

def _need(q, regs):
    n = None
    for k, (dst, _g, _m) in enumerate(q):
        if dst & regs: n = len(q) - 1 - k
    return n

def autowait(paths):
    changed = True; rounds = 0
    while changed:
        changed = False; rounds += 1
        assert rounds < 20
        for path in paths:
            seq = [x for b in path for x in b.ins]
            vq = []; lq = []; marks = {}; smem = set()
            n = len(seq)
            def setw(ins, vm, lg):
                nonlocal changed
                if vm is not None:
                    vm = min(vm, 63)
                    if ins.wvm is None or vm < ins.wvm: ins.wvm = vm; changed = True
                if lg is not None:
                    lg = min(lg, 15)
                    if ins.wlg is None or lg < ins.wlg: ins.wlg = lg; changed = True
            prev_real = None
            for k, ins in enumerate(seq):
                if prev_real is not None and prev_real.kind == 'mfma' and ins.kind not in ('label',):
                    regs = set(); j = k
                    while j < n:
                        x = seq[j]
                        if x.kind == 'label' or (x.kind == 'sctl' and x.op not in ('s_nop',)) : break
                        if x.kind != 'pseudo': regs |= x.rd | x.wr
                        if x.kind == 'mfma' or j - k > 6: break
                        j += 1
                    setw(ins, _need(vq, regs), _need(lq, regs) if not smem else None)
                regs = ins.rd | ins.wr
                if ins.kind == 'pseudo':
                    if ins.pseudo == 'mark': marks[ins.arg] = marks.get(ins.arg, 0) + 1
                    elif ins.pseudo == 'waitgrp':
                        name, lag = ins.arg; cur = marks.get(name, 0); nn = None
                        for kk, (_d, g, m) in enumerate(vq):
                            if g == name and m <= cur - lag: nn = len(vq) - 1 - kk
                        setw(ins, nn, None)
                    elif ins.pseudo == 'waitall': setw(ins, 0, 0)
                    elif ins.pseudo == 'waitlds': setw(ins, None, 0)
                    elif ins.pseudo == 'waitreg': setw(ins, _need(vq, regs), 0 if smem else _need(lq, regs))
                else:
                    lg = _need(lq, regs)
                    if smem & regs: lg = 0
                    elif smem and lg is not None: lg = 0
                    setw(ins, _need(vq, regs), lg)
                wv, wl = ins.wvm, ins.wlg
                if ins.op == 's_waitcnt':
                    for c, v in WAITCNT.findall(ins.text):
                        if c == 'vmcnt': wv = int(v) if wv is None else min(wv, int(v))
                        else: wl = int(v) if wl is None else min(wl, int(v))
                if wv is not None and len(vq) > wv: vq = vq[len(vq) - wv:] if wv else []
                if wl is not None:
                    if wl == 0: smem = set(); lq = []
                    elif len(lq) > wl: lq = lq[len(lq) - wl:]
                if ins.kind == 'vmem': vq.append((set(ins.wr), ins.grp, marks.get(ins.grp, 0)))
                elif ins.kind == 'ds': lq.append((set(ins.wr), None, 0))
                elif ins.kind == 'smem': smem |= ins.wr; lq.append((set(), None, 0))
                if ins.kind not in ('pseudo',): prev_real = ins

def _states(ins):
    if ins.kind in ('pseudo', 'label'):
        n = 0
    elif ins.op == 's_nop': n = int(ins.text.split()[1]) + 1
    else: n = 1
    return n

def hazards(paths, fix=True, verbose=False):
    added = []
    changed = True
    while changed:
        changed = False
        for path in paths:
            seq = [x for b in path for x in b.ins]
            for k, ins in enumerate(seq):
                if ins.kind in ('pseudo', 'label'): continue
                need = 0; why = ''
                dist = ins.nop + (1 if (ins.wvm is not None or ins.wlg is not None) else 0)
                j = k - 1
                isv = ins.kind in ('valu', 'trans')
                while j >= 0 and dist < 20:
                    p = seq[j]
                    req = 0
                    pv = p.kind in ('valu', 'trans')
                    vw = {r for r in p.wr if r[0] in 'va' and r != 'vcc'}
                    sw = {r for r in p.wr if r[0] == 's' and r != 'scc' or r == 'vcc'}
                    if pv:
                        if ins.kind == 'mfma' and vw & ins.rd: req = max(req, 2)
                        if ins.kind == 'mfma' and 'exec' in p.wr: req = max(req, 4)
                        if ins.dpp and vw & ins.rd: req = max(req, 2)
                        if ins.dpp and 'exec' in p.wr: req = max(req, 5)
                        if ins.op.startswith('v_permlane') and vw & ins.rd: req = max(req, 2)
                        if ins.op.startswith(('v_readlane', 'v_readfirstlane')) and vw & ins.rd: req = max(req, 1)
                        if ins.op.startswith(('v_readlane', 'v_readfirstlane', 'v_writelane', 'v_permlane')) and 'exec' in p.wr: req = max(req, 4)
                        if ins.kind == 'vmem' and sw & ins.rd: req = max(req, 5)
                        if isv and sw & ins.rd: req = max(req, 2)
                        if ins.kind in ('salu', 'sctl', 'smem') and sw & ins.rd: req = max(req, 4)
                        if p.kind == 'trans' and ins.kind != 'trans' and vw & (ins.rd | ins.wr): req = max(req, 1)
                    if p.kind == 'mfma':
                        ps = 4 if '16x16' in p.op else 8
                        t_ab = 8 if ps == 4 else 12; t_c = 6 if ps == 4 else 10; t_war = 3 if ps == 4 else 7
                        if ins.kind == 'mfma':
                            if p.wr & ins.ab: req = max(req, t_ab)
                            if p.wr & ins.srcC and p.wr != ins.srcC: req = max(req, t_c)
                            if p.wr & ins.wr and not (p.wr == ins.srcC and p.wr == ins.wr): req = max(req, t_ab)
                        else:
                            if p.wr & (ins.rd | ins.wr): req = max(req, t_ab)
                            if isv and p.srcC & ins.wr: req = max(req, t_war)
                    if p.kind == 'vmem' and len(p.sdata) >= 3 and p.sdata & ins.wr: req = max(req, 2)
                    if p.kind == 'salu' and 'm0' in p.wr and 'm0' in ins.rd: req = max(req, 1)
                    if p.kind == 'salu' and 'exec' in p.wr and (ins.dpp): req = max(req, 1)
                    if req - dist > need: need = req - dist; why = p.text
                    dist += _states(p) + p.nop + (1 if (p.wvm is not None or p.wlg is not None) else 0)
                    j -= 1
                if need > 0:
                    ins.nop += need; changed = True
                    added.append((ins.text, why, need))
    if verbose:
        for a in added: print('NOP', a)
    return added

def render(blocks):
    out = []
    for b in blocks:
        for ins in b.ins:
            w = []
            if ins.wvm is not None: w.append(f'vmcnt({ins.wvm})')
            if ins.wlg is not None: w.append(f'lgkmcnt({ins.wlg})')
            if w: out.append('s_waitcnt ' + ' '.join(w))
            n = ins.nop
            while n > 0:
                m = min(n, 16); out.append(f's_nop {m-1}'); n -= m
            if ins.kind != 'pseudo': out.append(ins.text)
    return '\n'.join(out) + '\n'

BINDS = []
def bind(items):
    last = {}
    for it in items:
        for r in it.rd:
            if r in last: BINDS.append((it, r, last[r]))
        for r in it.wr:
            last[r] = it
def check_binds(paths):
    want = {}
    for c, r, p in BINDS: want.setdefault(id(c), []).append((r, p))
    for path in paths:
        last = {}
        for ins in (x for b in path for x in b.ins):
            for r, p in want.get(id(ins), []):
                assert last.get(r) is p, f'binding broken: {ins.text} reads {r} from {last.get(r).text if last.get(r) else None}, wanted {p.text}'
            for r in ins.wr: last[r] = ins

class Slots:
    def __init__(self):
        self.m = []; self.sc = []; self.mem = []; self.va = []; self.post = {}
    def add(self, text):
        self.m.append(I(text)); self.sc.append([]); self.mem.append([]); self.va.append([]); return len(self.m) - 1
    def __len__(self): return len(self.m)
    def _cls(self, ins):
        return 'sc' if ins.kind in ('salu', 'sctl', 'pseudo', 'smem', 'label') else ('mem' if ins.kind in ('ds', 'vmem') else 'va')
    def put(self, k, ins):
        if isinstance(ins, str): ins = I(ins)
        assert 0 <= k < len(self.m), (k, len(self.m), ins.text)
        getattr(self, self._cls(ins))[k].append(ins); return k
    def used(self, k):
        u = 0
        for x in self.mem[k]: u += 8 if x.kind == 'vmem' else 4
        for x in self.va[k]: u += 8 if x.kind == 'trans' else 4
        return u
    def fits(self, k, ins):
        c = self._cls(ins)
        if c == 'sc': return ins.kind == 'pseudo' or not any(x.kind != 'pseudo' for x in self.sc[k])
        if c == 'mem':
            if self.mem[k]: return False
            return self.used(k) + (8 if ins.kind == 'vmem' else 4) <= 8
        return self.used(k) + (8 if ins.kind == 'trans' else 4) <= 8
    def place(self, ins, k):
        if isinstance(ins, str): ins = I(ins)
        while k < len(self.m) and not self.fits(k, ins): k += 1
        if k >= len(self.m): return None
        return self.put(k, ins)
    def chain(self, items, k, minstep=0):
        order = {'sc': 0, 'mem': 1, 'va': 2}
        prev = None
        items = [I(x) if isinstance(x, str) else x for x in items]
        bind(items)
        for n, it in enumerate(items):
            kk = k
            if prev is not None and 'm0' in prev.wr and 'm0' in it.rd: kk = k + 1
            if prev is not None and order[self._cls(it)] < order[self._cls(prev)]: kk = k + 1
            if prev is not None and self._cls(it) == 'mem' and self._cls(prev) == 'mem': kk = k + 1
            if prev is not None and self._cls(it) == 'mem': kk = max(kk, self._lastmem + minstep) if hasattr(self, '_lastmem') else kk
            r = self.place(it, kk)
            if r is None: return k, list(items[n:])
            if self._cls(it) == 'mem': self._lastmem = r
            k = r; prev = it
        if hasattr(self, '_lastmem'): del self._lastmem
        return k, []
    def raw(self, k, items):
        self.post.setdefault(k, []).extend(I(x) if isinstance(x, str) else x for x in items)
    def emit(self, blk):
        for k in range(len(self.m)):
            blk.add(self.m[k])
            for x in self.sc[k] + self.mem[k] + self.va[k] + self.post.get(k, []): blk.add(x)
```

```python
import os
from common import *
from ab import qreg, Str, SC1

V_CUR, V_NXT, V_DMA = 2, 3, 24
def S(kb2, qb): return 32 + (kb2*4 + qb)*4
def P(par, qb): return 64 + (par*4 + qb)*4
def CM(par, kb2, qb): return (96 + (kb2*4 + qb)*4) if par == 0 else ((144, 176)[kb2] + qb*4)
L_, NEGM, TMP = 208, 212, 216
TMP2 = 240
def O(db, qb): return (db*4 + qb)*4
def FR(buf, i): return 128 + (buf*4 + i)*4
sT, sNA, sNB, sNT, sKO, sVO, sSL, sEV, sFLAG, sREDO = 56, 57, 58, 59, 60, 61, 62, 63, 64, 65
sTRI = 68
sKB = 75 + 0
K0_LDS = 128 * 1024
NINF = '0xff800000'
THR = 0x53800000

def setup_scalar():
    L = []; e = lambda t: L.append(mk(t))
    e(f's_lshr_b32 s3, s{S_W}, 1')
    e(f's_lshl_b32 s{sNA}, s{S_P}, 1')
    e(f's_sub_u32 s{sNT}, 32, s{sNA}')
    e(f's_sub_u32 s{sNB}, s{sNT}, s3')
    e(f's_add_u32 s{sNA}, s{sNA}, s3')
    e(f's_add_u32 s{sNA}, s{sNA}, 1')
    e(f'v_add_u32 v{V_DMA}, s{S_W4K}, v{V_L16}')
    return L
def reset_stream():
    L = []; e = lambda t: L.append(mk(t))
    e(f's_lshl_b32 s{sVO}, s{S_H}, 20')
    e(f's_add_u32 s{sKO}, s{sVO}, {KV_OFF + 8192}')
    e(f's_add_u32 s{sVO}, s{sVO}, {KV_OFF + 524288}')
    e(f's_mov_b32 s{sSL}, s{S_W4K}')
    return L
def k0_dma():
    L = []; e = lambda t, g=None: L.append(mk(t, grp=g))
    e(f's_lshr_b32 s54, s{S_W4K}, 1')
    e(f's_add_u32 m0, s54, {K0_LDS}')
    e(f's_add_u32 s54, s54, s{sKO}')
    e(f's_sub_u32 s54, s54, 8192')
    for n in range(2): e(f'buffer_load_dwordx4 v{V_L16}, {srd(S_WS)}, s54 offen offset:{n*1024} sc1 lds', 'st')
    return L
def dma_k(n): return mk(f'buffer_load_dwordx4 v{V_DMA}, {srd(S_WS)}, s{sKO} offen offset:{n*1024} sc1 lds', grp='st')
def dma_v(n): return mk(f'buffer_load_dwordx4 v{V_DMA}, {srd(S_WS)}, s{sVO} offen offset:{n*1024} sc1 lds', grp='st')
def m0_k(): return mk(f's_mov_b32 m0, s{sSL}')
def m0_v(): return mk(f's_add_u32 m0, s{sSL}, 16384')
def advance():
    return [mk(f's_add_u32 s{sKO}, s{sKO}, 16384'), mk(f's_add_u32 s{sVO}, s{sVO}, 16384'),
            mk(f's_add_u32 s{sSL}, s{sSL}, 32768'), mk(f's_and_b32 s{sSL}, s{sSL}, 0x1ffff')]
def full_batch():
    return [mark('st'), m0_k()] + [dma_k(n) for n in range(4)] + [m0_v()] + [dma_v(n) for n in range(4)] + advance()

def exp_ops(par, kb2, qb, i):
    s = S(kb2, qb)
    E = mk(f'v_exp_f32 v{s+i}, v{s+i}')
    A = mk(f'v_add_f32 v{L_+qb}, v{L_+qb}, v{s+i}')
    C = mk(f'v_cvt_pk_bf16_f32 v{P(par, qb) + 2*kb2 + (i>>1)}, v{s+i-1}, v{s+i}') if i & 1 else None
    return E, A, C
def exp_block_plain(b, par, kb2, qb):
    ops = [exp_ops(par, kb2, qb, i) for i in range(4)]
    for E, A, C in ops: b.add(E)
    for E, A, C in ops:
        b.add(A)
        if C: b.add(C)

NPRE = 3

def body(b, qbs, last=False):
    nq = len(qbs); G = 4 * nq
    sl = Str()
    def qk(par, buf0):
        for kb2 in range(2):
            for qb in qbs:
                for ds in range(4):
                    d = vr(S(kb2, qb))
                    sl.add(f'{MF} {d}, {ar(FR(buf0 + kb2, ds))}, {vr(qreg(qb, ds))}, {vr(CM(par, kb2, qb)) if ds == 0 else d}')
    def pv(par, buf0):
        for db in range(8):
            for qb in qbs:
                o = ar(O(db, qb))
                sl.add(f'{MF} {o}, {ar(FR(buf0 + (db >> 2), db & 3))}, {vr(P(par, qb))}, {o}')
    def rd(buf, i, reg, off): return mk(f'ds_read_b128 {ar(FR(buf, i))}, v{reg} offset:{off}')
    kf = lambda kh, kb2, i: kh*8192 + (kb2*4 + i)*1024
    vf = lambda vh, hf, i: 16384 + vh*8192 + (hf*4 + i)*1024
    blocks = [(kb2, qb) for kb2 in range(2) for qb in qbs]
    tau = 2 * nq
    npend = tau // 4
    qk(1, 0); pv(0, 2)
    if not last:
        qk(0, 0); pv(1, 2)
        reads = [[rd(2, i, V_CUR, vf(0, 0, i)) for i in range(4)], [rd(3, i, V_CUR, vf(0, 1, i)) for i in range(4)],
                 [rd(0, i, V_CUR, kf(1, 0, i)) for i in range(4)], [rd(1, i, V_CUR, kf(1, 1, i)) for i in range(4)],
                 [rd(2, i, V_CUR, vf(1, 0, i)) for i in range(4)], [rd(3, i, V_CUR, vf(1, 1, i)) for i in range(4)],
                 [rd(0, i, V_NXT, kf(0, 0, i)) for i in range(4)], [rd(1, i, V_NXT, kf(0, 1, i)) for i in range(4)]]
        stream = [(0, *bl) for bl in blocks[-npend:]] + [(1, *bl) for bl in blocks] + [(0, *bl) for bl in blocks[:-npend]]
    else:
        reads = [[rd(2, i, V_CUR, vf(0, 0, i)) for i in range(4)], [rd(3, i, V_CUR, vf(0, 1, i)) for i in range(4)],
                 [rd(0, i, V_CUR, vf(1, 0, i)) for i in range(4)], [rd(1, i, V_CUR, vf(1, 1, i)) for i in range(4)]]
        stream = [(0, *bl) for bl in blocks[-npend:]] + [(1, *bl) for bl in blocks]
    npair = len(sl) // 2
    rstep = G // 8
    for g, R in enumerate(reads):
        for i, x in enumerate(R): sl.put(g*G + 2*i*rstep + 1, x)
    rest = []
    for n, (par, kb2, qb) in enumerate(stream):
        if 4*n >= npair: rest.append((par, kb2, qb)); continue
        for i in range(4):
            E, A, C = exp_ops(par, kb2, qb, i)
            pr = 4*n + i
            sl.put(2*pr, E); sl.put(2*pr + 1, A)
            if C: sl.put(2*pr + 1, C)
    if not last:
        N = len(sl); kb = 6*G
        step = max(2, (G * 5 // 8) & ~1)
        seq = [dma_k(n) for n in range(NPRE, 4)] + [m0_v()] + [dma_v(n) for n in range(4)]
        k = 2
        for x in seq:
            if x.kind == 'vmem': sl.put(k, x); k += step
            else: sl.put(k - 2, x)
        adv = advance() + [mk(f's_add_u32 s3, s{sT}, 3'), mk(f's_cmp_lt_u32 s3, s{sNT}'),
                           mk(f's_cselect_b32 s{sKO}, s{sKO}, {OOB}'), mk(f's_cselect_b32 s{sVO}, s{sVO}, {OOB}'), m0_k()]
        k = k - step + 1
        for x in adv: sl.put(k, x); k += 1
        assert k < kb, (k, kb)
        sl.put(kb, waitgrp('st', 1)); sl.put(kb, mk('s_barrier')); sl.put(kb, mark('st'))
        k = kb + 2
        for n in range(NPRE): sl.put(k, dma_k(n)); k += step
        assert k - step < N
        sl.put(N - 5, mk(f'v_mov_b32 v{V_CUR}, v{V_NXT}')) if False else None
        sl.raw(N - 1, [mk(f'v_mov_b32 v{V_CUR}, v{V_NXT}'), mk(f'v_add_u32 v{V_NXT}, 0x8000, v{V_NXT}'), mk(f'v_and_b32 v{V_NXT}, 0x1ffff, v{V_NXT}')])
        sl.put(N - 3, mk(f's_add_u32 s{sT}, s{sT}, 1'))
        sl.put(N - 2, mk(f's_cmp_lg_u32 s{sT}, s{sEV}'))
        sl.emit(b)
    else:
        sl.emit(b)
        b.e(f's_cmp_ge_u32 s{S_W}, 2')
        b.e('s_cbranch_scc0 L_at_nobar')
        b.e('s_waitcnt vmcnt(0)')
        b.e('s_barrier')
        b.e('L_at_nobar:')
        for par, kb2, qb in rest: exp_block_plain(b, par, kb2, qb)
        sl = Str(); pv(1, 0); sl.emit(b)

def fill_cm(b, par, qbs, val=None):
    for kb2 in range(2):
        for qb in qbs:
            for i in range(4): b.e(f'v_mov_b32 v{CM(par, kb2, qb)+i}, {val if val else "v%d" % (NEGM+qb)}')
def diag_cm(b, par, q0):
    b.e(f'v_mov_b32 v{TMP}, {NINF}')
    for i in range(4):
        m = f's[{sTRI+2*i}:{sTRI+2*i+1}]'
        b.e(f'v_cndmask_b32 v{CM(par, 0, q0)+i}, v{NEGM+q0}, v{TMP}, {m}')
        b.e(f'v_mov_b32 v{CM(par, 0, q0+1)+i}, v{NEGM+q0+1}')
        b.e(f'v_mov_b32 v{CM(par, 1, q0)+i}, v{TMP}')
        b.e(f'v_cndmask_b32 v{CM(par, 1, q0+1)+i}, v{NEGM+q0+1}, v{TMP}, {m}')
cnt = [0]
def mask(b, half, q0):
    cnt[0] += 1; n = cnt[0]
    b.e(f's_bitcmp1_b32 s{S_W}, 0')
    diag_if_odd = (half == 1) == (q0 == 0)
    b.e(f's_cbranch_scc{0 if diag_if_odd else 1} L_mk{n}a')
    diag_cm(b, half, q0)
    if half == 1:
        b.e(f's_branch L_mk{n}b')
        b.e(f'L_mk{n}a:')
        fill_cm(b, 1, (q0, q0+1), NINF)
        b.e(f'L_mk{n}b:')
    else:
        b.e(f'L_mk{n}a:')

def epilogue(b, q0):
    e = b.e
    for qb in (q0, q0 + 1):
        l = L_ + qb; t = TMP + (qb & 1)
        e(f'v_mov_b32 v{t}, v{l}')
    for qb in (q0, q0 + 1):
        l = L_ + qb; t = TMP + (qb & 1)
        e(f'v_permlane16_swap_b32 v{l}, v{t}')
        e(f'v_add_f32 v{l}, v{l}, v{t}')
        e(f'v_mov_b32 v{t}, v{l}')
    for qb in (q0, q0 + 1):
        l = L_ + qb; t = TMP + (qb & 1)
        e(f'v_permlane32_swap_b32 v{l}, v{t}')
        e(f'v_add_f32 v{l}, v{l}, v{t}')
    e(f'v_max_f32 v{TMP+2}, v{L_+q0}, v{L_+q0+1}')
    e(f'v_cmp_nle_f32 vcc, v{TMP+2}, v{TMP+3}')
    for qb in (q0, q0 + 1): e(f'v_rcp_f32 v{TMP + (qb&1)}, v{L_+qb}')
    e(f's_or_b32 s3, vcc_lo, vcc_hi')
    e(f's_or_b32 s{sFLAG}, s{sFLAG}, s3')
    n = 0
    for qb in (q0, q0 + 1):
        e(f's_lshl_b32 s55, s{S_H}, 12')
        e(f's_add_u32 s55, s55, s{S_SZ+qb}')
        for ds in range(4):
            t = TMP2 + (n & 1) * 8; n += 1
            for hb in range(2):
                for i in range(4): e(f'v_accvgpr_read_b32 v{t+4*hb+i}, a{O(2*ds+hb, qb)+i}')
            for i in range(8): e(f'v_mul_f32 v{t+i}, v{t+i}, v{TMP + (qb&1)}')
            for i in range(4): e(f'v_cvt_pk_bf16_f32 v{t+i}, v{t+2*i}, v{t+2*i+1}')
            e(f'buffer_store_dwordx4 {vr(t)}, v{V_L16}, {srd(S_WS)}, s55 offen offset:{ds*1024} {SC1}', grp='ctx')

def xmax(b, v, t):
    for sw in ('16', '32'):
        b.e(f'v_mov_b32 v{t}, v{v}')
        b.e(f'v_permlane{sw}_swap_b32 v{v}, v{t}')
        b.e(f'v_max_f32 v{v}, v{v}, v{t}')

def gen(hooks):
    hk = lambda n, b: hooks.get(n, lambda b: None)(b)
    pro = Block('at_pro'); e = pro.e
    e('L_at_start:')
    hk('at0', pro)
    e(f'v_lshrrev_b32 v{TMP}, 6, v{V_L16}')
    e(f'v_and_b32 v{TMP}, 12, v{TMP}')
    e(f'v_bfe_u32 v{TMP+1}, v{V_L16}, 4, 4')
    for i in range(4):
        e(f'v_add_u32 v{TMP+2}, {i}, v{TMP}')
        e(f'v_cmp_gt_u32 s[{sTRI+2*i}:{sTRI+2*i+1}], v{TMP+2}, v{TMP+1}')
    e(f'v_mov_b32 v{TMP+3}, {hex(THR)}')
    e(f'v_mov_b32 v{V_CUR}, v{V_L16}')
    e(f'v_add_u32 v{V_NXT}, {K0_LDS}, v{V_L16}')
    e(f's_mov_b32 s{sT}, 0')
    e(f's_mov_b32 s{sFLAG}, 0')
    for qb in range(4): e(f'v_mov_b32 v{L_+qb}, 0')
    e(f's_cmp_lg_u32 s{sREDO}, 0')
    e(f's_cbranch_scc1 L_at_havem')
    for qb in range(4): e(f'v_mov_b32 v{NEGM+qb}, 0')
    e('L_at_havem:')
    fill_cm(pro, 0, range(4))
    e(f's_cmp_eq_u32 s{sNA}, 1')
    e(f's_cbranch_scc0 L_at_nomask')
    mask(pro, 0, 0)
    e('L_at_nomask:')
    for i in range(128): e(f'v_accvgpr_write_b32 a{i}, 0')
    pro.waitgrp('st', 1)
    pro.waitlds()
    e('s_barrier')
    hk('at1', pro)
    for kb2 in range(2):
        for i in range(4): e(f'ds_read_b128 {ar(FR(2+kb2, i))}, v{V_NXT} offset:{(kb2*4+i)*1024}')
    for kb2 in range(2):
        for i in range(4): e(f'ds_read_b128 {ar(FR(kb2, i))}, v{V_CUR} offset:{(kb2*4+i)*1024}')
    pro.mark('st'); pro.add(m0_k())
    e(f'v_add_u32 v{V_NXT}, 0x8000, v{V_L16}')
    for n in range(NPRE): pro.add(dma_k(n))
    for kb2 in range(2):
        for qb in range(4):
            for ds in range(4):
                d = vr(S(kb2, qb))
                e(f'{MF} {d}, {ar(FR(2 + kb2, ds))}, {vr(qreg(qb, ds))}, {vr(CM(0, kb2, qb)) if ds == 0 else d}')
    e(f's_cmp_lg_u32 s{sREDO}, 0')
    e(f's_cbranch_scc1 L_at_havem2')
    for qb in range(4):
        a = S(0, qb); c = S(1, qb); m = NEGM + qb
        e(f'v_max3_f32 v{m}, v{a}, v{a+1}, v{a+2}')
        e(f'v_max3_f32 v{m}, v{m}, v{a+3}, v{c}')
        e(f'v_max3_f32 v{m}, v{m}, v{c+1}, v{c+2}')
        e(f'v_max_f32 v{m}, v{m}, v{c+3}')
    for sw in ('16', '32'):
        for qb in range(4): e(f'v_mov_b32 v{TMP2+qb}, v{NEGM+qb}')
        for qb in range(4): e(f'v_permlane{sw}_swap_b32 v{NEGM+qb}, v{TMP2+qb}')
        for qb in range(4): e(f'v_max_f32 v{NEGM+qb}, v{NEGM+qb}, v{TMP2+qb}')
    for qb in range(4): e(f'v_sub_f32 v{NEGM+qb}, 0, v{NEGM+qb}')
    for kb2 in range(2):
        for qb in range(4):
            for i in range(4): e(f'v_add_f32 v{S(kb2, qb)+i}, v{S(kb2, qb)+i}, v{NEGM+qb}')
    e('L_at_havem2:')
    fill_cm(pro, 0, range(4)); fill_cm(pro, 1, range(4))
    for j in range(6): exp_block_plain(pro, 0, j >> 2, j & 3)
    hk('at2', pro)
    dp = Block('at_disp'); e = dp.e
    e('L_at_disp:')
    e(f's_cmp_eq_u32 s{sT}, 2')
    e('s_cbranch_scc0 L_at_d0')
    e(f's_cmp_eq_u32 s{sREDO}, 0')
    e('s_cbranch_scc0 L_at_d0')
    for x in signal([mk(f's_mov_b32 s53, {4*C_PRE}')], TMP): dp.add(x)
    e('L_at_d0:')
    e(f's_add_u32 s3, s{sT}, 2')
    e(f's_cmp_eq_u32 s3, s{sNB}')
    e('s_cbranch_scc0 L_at_d1')
    mask(dp, 0, 2)
    e('L_at_d1:')
    e(f's_cmp_ge_u32 s{sT}, s{sNA}')
    e('s_cbranch_scc1 L_at_dB')
    e(f's_add_u32 s3, s{sT}, 2')
    e(f's_cmp_eq_u32 s3, s{sNA}')
    e('s_cbranch_scc0 L_at_d2')
    mask(dp, 0, 0)
    e('L_at_d2:')
    e(f's_add_u32 s{sEV}, s{sT}, 1')
    e(f's_cmp_eq_u32 s{sEV}, s{sNA}')
    e('s_cbranch_scc0 L_at_d3')
    mask(dp, 1, 0)
    fill_cm(dp, 0, (0, 1), NINF)
    e('L_at_d3:')
    e(f's_sub_u32 s3, s{sNA}, 2')
    e(f's_max_i32 s{sEV}, s{sEV}, s3')
    e(f's_cmp_lt_u32 s{sT}, 2')
    e(f's_cselect_b32 s3, 2, 64')
    e(f's_min_u32 s{sEV}, s{sEV}, s3')
    dual = Block('at_dual'); dual.e('.p2align 5'); dual.e('L_at_dual:')
    body(dual, (0, 1, 2, 3))
    dual.e('s_cbranch_scc1 L_at_dual')
    dual.e('s_branch L_at_disp')
    dB = Block('at_dB'); e = dB.e
    e('L_at_dB:')
    e(f's_cmp_eq_u32 s{sT}, s{sNA}')
    e('s_cbranch_scc0 L_at_dB2')
    tr = Block('at_tr')
    hk('at3', tr)
    exp_block_plain(tr, 0, 1, 2)
    epilogue(tr, 0)
    dC = Block('at_dC'); e = dC.e
    e('L_at_dB2:')
    e(f's_add_u32 s{sEV}, s{sT}, 1')
    e(f's_cmp_eq_u32 s{sEV}, s{sNB}')
    e('s_cbranch_scc1 L_at_last')
    e(f's_sub_u32 s3, s{sNB}, 2')
    e(f's_max_u32 s{sEV}, s{sEV}, s3')
    e(f's_cmp_lt_u32 s{sT}, 2')
    e(f's_cselect_b32 s3, 2, 64')
    e(f's_min_u32 s{sEV}, s{sEV}, s3')
    single = Block('at_single'); single.e('.p2align 5'); single.e('L_at_single:')
    body(single, (2, 3))
    single.e('s_cbranch_scc1 L_at_single')
    single.e('s_branch L_at_disp')
    last = Block('at_last'); last.e('L_at_last:')
    hk('at_last', last)
    mask(last, 1, 2)
    body(last, (2, 3), last=True)
    hk('at4', last)
    epilogue(last, 2)
    redo = gen_redo()
    dpB = Block('at_disp_toB')
    k = next(i for i, x in enumerate(dp.ins) if x.text == 's_cbranch_scc1 L_at_dB')
    dpB.ins = dp.ins[:k + 1]
    blocks = [pro, dp, dual, dB, tr, dC, single, last]
    tails = [[pro, dp, dual, dual, dual, dp, dual, dpB, dB, tr, dC, single, single, single, dpB, dB, dC, single, dpB, dB, dC, last],
             [pro, dp, dual, dpB, dB, tr, dC, last], [pro, dp, dual, dpB, dB, tr, dC, single, dpB, dB, dC, last]]
    return blocks, tails, redo

def gen_redo():
    b = Block('redo'); e = b.e
    e('L_redo:')
    e('s_waitcnt vmcnt(0) lgkmcnt(0)')
    e('s_barrier')
    e(f's_mov_b32 s{sREDO}, -1')
    for qb in range(4): e(f'v_mov_b32 v{L_+qb}, {NINF}')
    for qb in range(4): e(f'v_mov_b32 v{NEGM+qb}, 0')
    e(f's_lshl_b32 s{sKO}, s{S_H}, 20')
    e(f's_add_u32 s{sKO}, s{sKO}, {KV_OFF}')
    e(f's_lshr_b32 s54, s{S_W4K}, 1')
    e(f's_add_u32 s{sKO}, s{sKO}, s54')
    e(f's_mov_b32 s{sT}, 0')
    e(f's_lshl_b32 s{sVO}, s{S_P}, 2')
    e(f's_add_u32 s{sVO}, s{sVO}, s{S_W}')
    e(f's_sub_u32 s{sSL}, 63, s{sVO}')
    e(f's_lshl_b32 s{sEV}, s{sNT}, 1')
    e('L_redo_loop:')
    e(f's_mov_b32 m0, s54')
    e('s_nop 0')
    for n in range(2): e(f'buffer_load_dwordx4 v{V_L16}, {srd(S_WS)}, s{sKO} offen offset:{n*1024} sc1 lds')
    for q0, sd in ((0, sVO), (2, sSL)):
        e(f's_cmp_eq_u32 s{sT}, s{sd}')
        e(f's_cbranch_scc1 L_redo_d{q0}')
        e(f's_cmp_lt_u32 s{sT}, s{sd}')
        e(f's_cselect_b32 s3, 0, {NINF}')
        fill_cm(b, 0, (q0, q0 + 1), 's3')
        e(f's_branch L_redo_e{q0}')
        e(f'L_redo_d{q0}:')
        diag_cm(b, 0, q0)
        e(f'L_redo_e{q0}:')
    e('s_waitcnt vmcnt(0)')
    e('s_barrier')
    for kb2 in range(2):
        for i in range(4): e(f'ds_read_b128 {ar(FR(kb2, i))}, v{V_L16} offset:{(kb2*4+i)*1024}')
    e('s_waitcnt lgkmcnt(0)')
    e('s_barrier')
    for kb2 in range(2):
        for qb in range(4):
            for ds in range(4):
                d = vr(S(kb2, qb))
                e(f'{MF} {d}, {ar(FR(kb2, ds))}, {vr(qreg(qb, ds))}, {vr(CM(0, kb2, qb)) if ds == 0 else d}')
    e('s_nop 7')
    for qb in range(4):
        for kb2 in range(2):
            a = S(kb2, qb)
            e(f'v_max3_f32 v{L_+qb}, v{L_+qb}, v{a}, v{a+1}')
            e(f'v_max3_f32 v{L_+qb}, v{L_+qb}, v{a+2}, v{a+3}')
    e(f's_add_u32 s{sKO}, s{sKO}, 8192')
    e(f's_add_u32 s{sT}, s{sT}, 1')
    e(f's_cmp_lt_u32 s{sT}, s{sEV}')
    e('s_cbranch_scc1 L_redo_loop')
    for qb in range(4):
        xmax(b, L_ + qb, TMP)
        e(f'v_sub_f32 v{NEGM+qb}, 0, v{L_+qb}')
    e(f'v_add_u32 v{V_DMA}, s{S_W4K}, v{V_L16}')
    for x in reset_stream() + [mark('st')] + k0_dma() + full_batch()[1:] + full_batch(): b.add(x)
    e('s_waitcnt vmcnt(0)')
    e('s_branch L_at_start')
    return b

def b4_hook(sl, base, B, endB, GL, tag):
    sl.ch([mk(f's_lshl_b32 s1, s{S_H}, 2'), mk(f's_add_u32 s1, s1, {4*C_KV}')] + poll_issue(1, 31), B(3) + GL // 2)
    sl.ch(setup_scalar() + reset_stream() + [mk(f's_mov_b32 s{sREDO}, 0')], B(3) + 4)
    sl.raw(B(4), poll_check('kv' + tag, 1, 31, 8))
    items = [mark('st')] + k0_dma() + full_batch()[1:] + full_batch()
    bind(items)
    k = B(4) + 2
    for x in items:
        if x.kind == 'vmem': sl.put(k, x); k += 4
        else:
            sl.put(k, x)
            if x.kind != 'pseudo': k += 1
```

```python
from asmlib import *

NAME = 'parallel_sum__compressed_kv_cla__dense_activation_silu__prompt'
XN_OFF = 0
KV_OFF = 4 << 20
Z_OFF  = 40 << 20
WT_OFF = 64 << 20
WS_BYTES = 1 << 28
OOB = 0x7F000000
ZS = 182

S_WS, S_X, S_CKV, S_WUK, S_WUV, S_WQ, S_W1, S_WO, S_W2, S_OUT = 4, 8, 12, 16, 20, 24, 28, 32, 36, 40
S_DBG = 44
S_H, S_P, S_W = 48, 49, 50
S_T = 51
S_W8K, S_W4K = 66, 67
S_SX, S_SZ = 76, 80
C_XN, C_KV, C_PRE, C_CTX = 0, 8, 40, 48
def srd(n): return f's[{n}:{n+3}]'
SIZES = {S_WS: WS_BYTES, S_X: 2048*640*2, S_CKV: 2048*512*2, S_WUK: 512*4096*2, S_WUV: 512*4096*2, S_WQ: 640*4096*2,
         S_W1: 640*1728*2, S_WO: 4096*640*2, S_W2: 1728*640*2, S_OUT: 2048*640*2}
KARG = {S_X: 0, S_CKV: 8, S_WQ: 16, S_WUK: 24, S_WUV: 32, S_WO: 40, S_W1: 56, S_W2: 64, S_OUT: 72, S_WS: 88}
V_L16 = 1

def vr(a, n=4): return f'v[{a}:{a+n-1}]'
def ar(a, n=4): return f'a[{a}:{a+n-1}]'
MF = 'v_mfma_f32_16x16x32_bf16'

def entry(b, srds, endlabel, codebytes):
    b.e(f's_cmp_ge_u32 s2, 256')
    b.e(f's_cbranch_scc1 {endlabel}')
    for s in srds: b.e(f's_load_dwordx2 s[{s}:{s+1}], s[0:1], {KARG[s]}')
    b.e(f's_load_dwordx2 s[{S_DBG}:{S_DBG+1}], s[0:1], 80')
    b.e(f's_getpc_b64 s[52:53]')
    b.e(f's_lshr_b32 s3, s2, 3')
    b.e(f's_lshl_b32 s54, s3, 12')
    b.e(f's_min_u32 s54, s54, {max(0, ((codebytes - 256) // 4096) * 4096 - 4096)}')
    b.e(f'v_lshl_add_u32 v6, v0, 4, s54')
    b.e(f'global_load_dwordx4 v[60:63], v6, s[52:53]')
    b.e(f's_and_b32 s{S_H}, s2, 7')
    b.e(f's_lshl_b32 s{S_H}, s{S_H}, 2')
    b.e(f's_and_b32 s{S_T}, s3, 3')
    b.e(f's_add_u32 s{S_H}, s{S_H}, s{S_T}')
    b.e(f's_lshr_b32 s{S_P}, s3, 2')
    b.e(f'v_lshrrev_b32 v6, 6, v0')
    b.e(f'v_and_b32 v0, 63, v0')
    b.e(f'v_readfirstlane_b32 s{S_W}, v6')
    b.e(f'v_lshlrev_b32 v{V_L16}, 4, v0')
    for s in srds:
        b.e(f's_mov_b32 s{s+2}, {SIZES[s]}')
        b.e(f's_mov_b32 s{s+3}, 0x20000')
    b.e(f's_mov_b32 s{S_DBG+2}, 256')
    b.e(f's_mov_b32 s{S_DBG+3}, 0x20000')
    b.e(f's_lshl_b32 s{S_W8K}, s{S_W}, 13')
    b.e(f's_lshl_b32 s{S_W4K}, s{S_W}, 12')

V_SIG = 0
SPINS = []
def signal(soff_ins, tmp):
    return list(soff_ins) + [mk(f'v_mov_b32 v{tmp}, 1'), mk(f'buffer_atomic_add v{tmp}, v{V_SIG}, {srd(S_DBG)}, s53 offen sc1', grp='sig')]
def poll_issue(sreg, tmp):
    return [mk(f'buffer_load_dword v{tmp}, off, {srd(S_DBG)}, s{sreg} sc1', grp='poll')]
def poll_check(name, sreg, tmp, count):
    sp = Block('spin_' + name)
    sp.e(f'L_spin_{name}:')
    sp.e(f's_mov_b32 s0, 200000')
    sp.e(f'L_spin_{name}_l:')
    sp.e(f's_sleep 4')
    sp.e(f'buffer_load_dword v{tmp}, off, {srd(S_DBG)}, s{sreg} sc1')
    sp.e(f's_waitcnt vmcnt(0)')
    sp.e(f'v_readfirstlane_b32 s3, v{tmp}')
    sp.e(f's_nop 3')
    sp.e(f's_cmp_ge_u32 s3, {count}')
    sp.e(f's_cbranch_scc1 L_back_{name}')
    sp.e(f's_sub_u32 s0, s0, 1')
    sp.e(f's_cmp_lg_u32 s0, 0')
    sp.e(f's_cbranch_scc1 L_spin_{name}_l')
    sp.e(f's_branch L_back_{name}')
    SPINS.append(sp)
    return [mk(f'v_readfirstlane_b32 s3, v{tmp}'), mk('s_nop 3'), mk(f's_cmp_ge_u32 s3, {count}'), mk(f's_cbranch_scc0 L_spin_{name}'), mk(f'L_back_{name}:')]

def header(launches):
    L = [f'; @launch kernel={k} grid=(256,1,1) block=(256,1,1) lds={lds}' for k, lds in launches]
    L.append('.amdgcn_target "amdgcn-amd-amdhsa--gfx950"')
    L.append('.text')
    return '\n'.join(L) + '\n'
def kstart(k): return f'.globl {k}\n.p2align 8\n.type {k},@function\n{k}:\n'
def kdesc(k):
    return f'''.amdhsa_kernel {k}
  .amdhsa_next_free_vgpr 512
  .amdhsa_next_free_sgpr 102
  .amdhsa_accum_offset 256
  .amdhsa_group_segment_fixed_size 0
  .amdhsa_kernarg_size 96
  .amdhsa_user_sgpr_count 2
  .amdhsa_user_sgpr_kernarg_segment_ptr 1
  .amdhsa_system_sgpr_workgroup_id_x 1
  .amdhsa_float_denorm_mode_32 3
.end_amdhsa_kernel
'''

DIAG = False
STAMP_OFF = 80 << 20
RT = False
def stamp(n):
    return mk(f's_mem{"real" if RT else ""}time s[{84+2*n}:{85+2*n}]')
def stamp_entry(b):
    if DIAG: b.e('s_memrealtime s[98:99]'); b.add(stamp(0))
def stamp_exit(b, kidx):
    if not DIAG: return
    b.e('s_waitcnt vmcnt(0)')
    b.add(stamp(6))
    b.e('s_memrealtime s[100:101]')
    b.e('s_waitcnt lgkmcnt(0)')
    b.e(f's_lshl_b32 s3, s2, 2')
    b.e(f's_add_u32 s3, s3, s{S_W}')
    b.e(f's_lshl_b32 s3, s3, 6')
    b.e(f's_add_u32 s3, s3, {STAMP_OFF + kidx*65536}')
    for n in range(9):
        b.e(f'v_mov_b32 v2, s{84+2*n}')
        b.e(f'v_mov_b32 v3, 0')
        b.e(f'buffer_store_dword v2, v3, {srd(S_WS)}, s3 offen offset:{4*n}')
```

```python
from common import *
from ab import Str
import attn

ACC = 128
def acc(nb, rb): return ACC + (nb*4 + rb)*4
BLK = [('a', 128 + 4*i) for i in range(32)] + [('v', 32 + 4*i) for i in range(22)]
def blk(buf, i):
    f, r = BLK[buf*18 + i]; return f'{f}[{r}:{r+3}]'
def zf(buf, st, rb): return blk(buf, st*4 + rb)
def wf(buf, st, nb): return blk(buf, 8 + st*5 + nb)
VZ = 4
VW = 8
VX = 10
XR = 12
VP = 22
sDZ, sDW, sRT, sCT = 76, 77, 78, 79
ND = 23
FLAG_LDS = 159 * 1024

def setup():
    L = []; e = lambda t: L.append(mk(t))
    e(f's_and_b32 s51, s2, 7')
    e(f's_lshr_b32 s52, s2, 3')
    e(f's_lshr_b32 s{sRT}, s51, 1')
    e(f's_lshl_b32 s{sRT}, s{sRT}, 3')
    e(f's_lshr_b32 s53, s52, 2')
    e(f's_add_u32 s{sRT}, s{sRT}, s53')
    e(f's_and_b32 s{sCT}, s51, 1')
    e(f's_lshl_b32 s{sCT}, s{sCT}, 2')
    e(f's_and_b32 s53, s52, 3')
    e(f's_add_u32 s{sCT}, s{sCT}, s53')
    e(f's_mul_i32 s51, s{S_W}, 14')
    e(f's_min_u32 s51, s51, 41')
    e(f's_add_u32 s51, s51, 128')
    e(f's_mul_i32 s52, s{sRT}, {4*ZS}')
    e(f's_add_u32 s52, s52, s51')
    e(f's_lshl_b32 s52, s52, 10')
    e(f's_add_u32 s{sDZ}, s52, {Z_OFF}')
    e(f's_mul_i32 s52, s{sCT}, {ZS}')
    e(f's_add_u32 s52, s52, s51')
    e(f's_mul_i32 s52, s52, 5120')
    e(f's_add_u32 s{sDW}, s52, {WT_OFF}')
    for rb in range(4): e(f'v_add_u32 v{VZ+rb}, {rb*ZS*1024}, v{V_L16}')
    e(f'v_add_u32 v{VW}, 4096, v{V_L16}')
    e(f'v_add_u32 v{VW+1}, 8192, v{V_L16}')
    e(f's_lshl_b32 s51, s{sRT}, 2')
    e(f's_add_u32 s51, s51, s{S_W}')
    e(f's_mul_i32 s51, s51, {16*1280}')
    e(f's_mul_i32 s52, s{sCT}, 160')
    e(f's_add_u32 s51, s51, s52')
    e(f'v_bfe_u32 v{VX}, v{V_L16}, 4, 4')
    e(f'v_mul_u32_u24 v{VX}, 1280, v{VX}')
    e(f'v_add_u32 v{VX}, s51, v{VX}')
    e(f'v_lshrrev_b32 v{XR}, 8, v{V_L16}')
    e(f'v_lshl_add_u32 v{VX+1}, v{XR}, 3, v{VX}')
    e(f'v_lshl_add_u32 v{VX}, v{XR}, 4, v{VX}')
    return L

def loads(d):
    buf = d % 3
    L = []; e = lambda t: L.append(mk(t, grp='d'))
    if d == 7:
        e(f's_mul_i32 s51, s{sRT}, {4*ZS}')
        e(f's_lshl_b32 s52, s{S_W}, 5')
        e(f's_add_u32 s51, s51, s52')
        e(f's_lshl_b32 s51, s51, 10')
        e(f's_add_u32 s{sDZ}, s51, {Z_OFF}')
        e(f's_mul_i32 s51, s{sCT}, {ZS}')
        e(f's_add_u32 s51, s51, s52')
        e(f's_mul_i32 s51, s51, 5120')
        e(f's_add_u32 s{sDW}, s51, {WT_OFF}')
    elif d > 0:
        e(f's_add_u32 s{sDZ}, s{sDZ}, 2048')
        e(f's_add_u32 s{sDW}, s{sDW}, 10240')
    z2, w2 = sDZ, sDW
    if d == 6:
        e(f's_cmp_lt_u32 s{S_W}, 2')
        e(f's_cselect_b32 s51, s{sDZ}, {OOB}')
        e(f's_cselect_b32 s52, s{sDW}, {OOB}')
        z2, w2 = 51, 52
    for st in range(2):
        for rb in range(4):
            e(f'buffer_load_dwordx4 {zf(buf, st, rb)}, v{VZ+rb}, {srd(S_WS)}, s{z2 if st else sDZ} offen offset:{st*1024} sc1')
        for nb in range(5):
            o = (st*5 + nb)*1024
            e(f'buffer_load_dwordx4 {wf(buf, st, nb)}, v{(V_L16, VW, VW+1)[o >> 12]}, {srd(S_WS)}, s{w2 if st else sDW} offen offset:{o & 4095} sc1')
    return L

def pre_poll_issue(): return [mk(f's_mov_b32 s1, {4*C_PRE}')] + poll_issue(1, VP)

def gen(b, hooks):
    hk = lambda n: hooks.get(n, lambda b: None)(b)
    e = b.e
    hk('d0')
    for x in setup(): b.add(x)
    e(f'v_mov_b32 v{XR}, s{attn.sFLAG}')
    e(f's_lshl_b32 s3, s{S_W}, 2')
    e(f's_add_u32 s3, s3, {FLAG_LDS}')
    e(f'v_mov_b32 v{XR+1}, s3')
    e(f'ds_write_b32 v{XR+1}, v{XR}')
    for x in poll_check('pre', 1, VP, 256): b.add(x)
    for d in range(3):
        for x in loads(d): b.add(x)
    b.waitgrp('ctx')
    b.waitlds()
    e('s_barrier')
    e(f'v_mov_b32 v{XR+1}, {FLAG_LDS}')
    e(f'ds_read_b128 {vr(XR+2)}, v{XR+1}')
    e(f'v_or_b32 v{XR+2}, v{XR+2}, v{XR+3}')
    e(f'v_or3_b32 v{XR+2}, v{XR+2}, v{XR+4}, v{XR+5}')
    e(f'v_readfirstlane_b32 s3, v{XR+2}')
    e(f's_andn2_b32 s3, s3, s{attn.sREDO}')
    e(f's_cmp_lg_u32 s3, 0')
    e(f's_cbranch_scc1 L_redo')
    for x in signal([mk(f's_lshl_b32 s53, s{S_P}, 2'), mk(f's_add_u32 s53, s53, {4*C_CTX}')], XR): b.add(x)
    e(f's_lshr_b32 s1, s{sRT}, 1')
    e(f's_sub_u32 s3, 15, s1')
    e(f's_min_u32 s1, s1, s3')
    e(f's_lshl_b32 s1, s1, 2')
    e(f's_add_u32 s1, s1, {4*C_CTX}')
    hk('d1')
    sl = Str()
    st0 = {}
    for d in range(ND):
        st0[d] = len(sl); buf = d % 3
        for nb in range(5):
            for rb in range(4):
                for st in range(2):
                    a = vr(acc(nb, rb))
                    sl.add(f'{MF} {a}, {wf(buf, st, nb)}, {zf(buf, st, rb)}, {"0" if d == 0 and st == 0 else a}')
    for d in range(1, ND - 2):
        items = loads(d + 2); bind(items)
        k = st0[d]
        if d + 2 == 7:
            sl.raw(k, poll_check('ctx', 1, VP, 32)); k += 1
        for x in items:
            if x.kind == 'vmem': sl.put(k, x); k += 2
            else: sl.put(k, x)
        assert k - 2 < st0[d] + 40
    sl.put(st0[4] + 1, poll_issue(1, VP)[0])
    xl = [mk(f'buffer_load_dwordx4 {vr(XR)}, v{VX}, {srd(S_X)}, 0 offen'), mk(f'buffer_load_dwordx4 {vr(XR+4)}, v{VX}, {srd(S_X)}, 0 offen offset:64'),
          mk(f'buffer_load_dwordx2 {vr(XR+8, 2)}, v{VX+1}, {srd(S_X)}, 0 offen offset:128')]
    for j, x in enumerate(xl): sl.put(st0[ND-2] + 2*j, x)
    sl.emit(b)
    hk('d2')
    e(f's_mul_i32 s3, s{S_W}, 20480')
    e(f'v_add_u32 v{VZ}, s3, v{V_L16}')
    e(f's_lshl_b32 s3, s{S_W}, 10')
    e(f'v_add_u32 v{VZ+1}, s3, v{V_L16}')
    e(f'v_add_u32 v{VZ+2}, 40960, v{VZ+1}')
    for nb in range(5):
        for rb in range(4): e(f'ds_write_b128 v{VZ}, {vr(acc(nb, rb))} offset:{(nb*4 + rb)*1024}')
    b.waitlds()
    e('s_barrier')
    R = 32
    for nb in range(5):
        for w in range(4): e(f'ds_read_b128 {vr(R + (nb*4 + w)*4)}, v{VZ + 1 + (w >> 1)} offset:{(w & 1)*20480 + nb*4096}')
    T = 208
    for k in range(10):
        e(f'v_lshlrev_b32 v{T+2*k}, 16, v{XR+k}')
        e(f'v_and_b32 v{T+2*k+1}, 0xffff0000, v{XR+k}')
    for nb in range(5):
        for i in range(4):
            r = R + nb*16 + i
            e(f'v_add_f32 v{r}, v{r}, v{r+4}')
            e(f'v_add_f32 v{r+8}, v{r+8}, v{r+12}')
            e(f'v_add_f32 v{r}, v{r}, v{r+8}')
            e(f'v_add_f32 v{r}, v{r}, v{T + nb*4 + i}')
        e(f'v_cvt_pk_bf16_f32 v{XR+2*nb}, v{R+nb*16}, v{R+nb*16+1}')
        e(f'v_cvt_pk_bf16_f32 v{XR+2*nb+1}, v{R+nb*16+2}, v{R+nb*16+3}')
        if nb == 1: e(f'buffer_store_dwordx4 {vr(XR)}, v{VX}, {srd(S_OUT)}, 0 offen')
        if nb == 3: e(f'buffer_store_dwordx4 {vr(XR+4)}, v{VX}, {srd(S_OUT)}, 0 offen offset:64')
        if nb == 4: e(f'buffer_store_dwordx2 {vr(XR+8, 2)}, v{VX+1}, {srd(S_OUT)}, 0 offen offset:128')
```

```python
import sys, os, copy
sys.path.insert(0, os.path.dirname(__file__))
from common import *
import common, ab, attn, phd

KNAME = NAME + '_kernel'
QDBG_OFF = 96 << 20

def build(stop, verbose, codebytes):
    hooks = {}
    stg = eval(os.environ.get('STG', '{}'))
    if common.DIAG:
        def hc(sl, base):
            for st in range(7):
                if f'A{st}' in stg: sl.put(base[st], stamp(stg[f'A{st}']))
        def hv(sl, base, B, endB, GL):
            if 'A7' in stg: sl.put(0, stamp(stg['A7']))
            for sg in range(5):
                if f'B{sg}' in stg: sl.put(B(sg), stamp(stg[f'B{sg}']))
            if 'Be' in stg: sl.put(len(sl) - 1, stamp(stg['Be']))
        hooks['common'] = hc; hooks['var_diag'] = hv
        for n in range(5):
            if f'C{n}' in stg: hooks[f'at{n}'] = (lambda n: lambda b: b.add(stamp(stg[f'C{n}'])))(n)
        for n in range(3):
            if f'D{n}' in stg: hooks[f'd{n}'] = (lambda n: lambda b: b.add(stamp(stg[f'D{n}'])))(n)
    def var_hook(tag):
        def f(sl, base, B, endB, GL):
            if stop != 'B': attn.b4_hook(sl, base, B, endB, GL, tag)
            hooks.get('var_diag', lambda *a: None)(sl, base, B, endB, GL)
        return dict(hooks, var=f)
    b0 = Block('common')
    stamp_entry(b0)
    entry(b0, [S_WS, S_X, S_CKV, S_WUK, S_WUV, S_WQ, S_W1, S_WO, S_W2, S_OUT], 'L_end', codebytes)
    img = ab.Img()
    ab.gen_common(b0, img, hooks)
    b0.e(f's_cmp_ge_u32 s{S_H}, 27')
    b0.e('s_cbranch_scc1 L_varN')
    bH = Block('varH'); ab.gen_var(bH, copy.deepcopy(img), True, 'H', var_hook('H'))
    bH.e('s_branch L_afterB')
    bN = Block('varN'); bN.e('L_varN:'); ab.gen_var(bN, copy.deepcopy(img), False, 'N', var_hook('N'))
    bj = Block('join'); bj.e('L_afterB:')
    if stop == 'D':
        def lasth(b):
            for x in phd.pre_poll_issue(): b.add(x)
        hooks['at_last'] = lasth
    mid, tails, redo = ([], [[]], None) if stop == 'B' else attn.gen(hooks)
    bz = Block('rest')
    extra = []
    if stop == 'D':
        phd.gen(bz, hooks)
        extra = [redo]
    if stop == 'B':
        bz.e(f's_lshl_b32 s3, s2, 2'); bz.e(f's_add_u32 s3, s3, s{S_W}'); bz.e('s_lshl_b32 s3, s3, 14'); bz.e(f's_add_u32 s3, s3, {QDBG_OFF}')
        for rb in range(4):
            for ds in range(4):
                bz.e(f'buffer_store_dwordx4 {vr(ab.qreg(rb, ds))}, v{V_L16}, {srd(S_WS)}, s3 offen offset:{ds*1024}')
            bz.e('s_add_u32 s3, s3, 4096')
    stamp_exit(bz, 0)
    bz.e('L_end:')
    bz.e('s_endpgm')
    paths = [[b0, bH, bj] + t + [bz] for t in tails] + [[b0, bN, bj] + tails[0] + [bz]]
    if extra: paths.append([redo, redo] + tails[1] + [bz])
    check_binds(paths)
    autowait(paths)
    hazards(paths, verbose=verbose)
    return render([b0, bH, bN, bj] + mid + [bz] + extra + SPINS)

def main(out, stop, verbose=False):
    body = build(stop, verbose, int(os.environ.get('CODEBYTES', '40000')))
    txt = f'; @launch grid=(256,1,1) block=(256,1,1) lds=163840\n.amdgcn_target "amdgcn-amd-amdhsa--gfx950"\n.text\n'
    txt += kstart(KNAME) + body + '.section .rodata,"a"\n.p2align 6\n' + kdesc(KNAME)
    open(out, 'w').write(txt)

if __name__ == '__main__':
    common.DIAG = 'diag' in sys.argv; common.RT = 'rt' in sys.argv
    main(sys.argv[1], sys.argv[2], verbose='-v' in sys.argv)
```

```python
import os
from common import *

VA_CK = 2; VA_W = 6; VA_T = 10; VA_P = 18; VA_ST = 24; VA_WD = 25; VA_WP = 30; VA_WS = 31
WF = 32; PK = 64; ACCA = 128; ACCB = 64
LNA = 64; LNR = 72; LNX = 84; LNT = 108; WTR = 64
STG = (2, 18)
VB_HD = 25
VB_HT = (22, 23, 29, 30)
WT_LDS = 128 * 1024
SC1 = 'sc1'
W_REG = [0, 1, 0, 1, 3, 0, 2, 1]
P_REG = [1, 2, 3, 4, 2, 3, 4, 2]
BQ = [96*1024, 64*1024, 32*1024, 96*1024, 64*1024]
BH = [0, 16*1024, 128*1024, 0, 144*1024]
LN_LDS = 148 * 1024
S_HC = 75
WT_S = (56, 68); WT_S2 = (64, 65); S_WTL = 74
QSCALE = 0.12751743082459868

def acca(cb, rb): return ACCA + (cb * 4 + rb) * 4
def accb(cb, rb): return ACCB + (cb * 4 + rb) * 4
def qreg(rb, ds): return accb(4 + 2*ds, rb)
def ck(rb, s): return (s * 4 + rb) * 4

def setup(b):
    e = b.e
    e('v_and_b32 v32, 15, v0')
    e('v_lshrrev_b32 v33, 4, v0')
    e('v_bfe_u32 v34, v0, 2, 2')
    e('v_and_b32 v35, 3, v0')
    e(f's_lshl_b32 s{S_T}, s{S_P}, 8')
    e(f's_lshl_b32 s{S_T+1}, s{S_W}, 6')
    e(f's_add_u32 s{S_T}, s{S_T}, s{S_T+1}')
    e('v_lshrrev_b32 v36, 3, v0')
    e(f'v_add_u32 v36, s{S_T}, v36')
    e(f'v_lshlrev_b32 v36, 10, v36')
    e('v_and_b32 v37, 7, v0')
    e('v_xor_b32 v37, v37, v33')
    e(f'v_lshl_add_u32 v{VA_CK}, v37, 4, v36')
    e(f'v_xor_b32 v{VA_CK+1}, 64, v{VA_CK}')
    e(f'v_add_u32 v{VA_CK+2}, {2*7168}, v{VA_CK}')
    e(f'v_add_u32 v{VA_CK+3}, {3*7168}, v{VA_CK+1}')
    e(f'v_add_u32 v{VA_CK+1}, {1*7168}, v{VA_CK+1}')
    V = VA_W
    e('v_bfe_u32 v36, v0, 1, 3')
    e('v_xor_b32 v36, v36, v33')
    e('v_lshlrev_b32 v37, 13, v33')
    e('v_lshl_add_u32 v37, v36, 5, v37')
    e('v_and_b32 v38, 1, v0')
    e('v_lshl_add_u32 v37, v38, 4, v37')
    e(f's_lshl_b32 s{S_T}, s{S_H}, 8')
    e(f's_lshl_b32 s{S_T+1}, s{S_W}, 17')
    e(f's_add_u32 s{S_T}, s{S_T}, s{S_T+1}')
    e(f'v_add_u32 v{V}, s{S_T}, v37')
    e(f'v_xor_b32 v{V+2}, 128, v{V}')
    e(f'v_add_u32 v{V+1}, {4*8192 - 1024}, v{V}')
    e(f'v_add_u32 v{V+3}, {3*(4*8192 - 1024)}, v{V+2}')
    e(f'v_add_u32 v{V+2}, {2*(4*8192 - 1024)}, v{V+2}')

def setup_x(b):
    e = b.e
    e(f's_lshl_b32 s{S_T}, s{S_H}, 3')
    e(f's_sub_u32 s{S_T+1}, 14, s{S_P}')
    e(f's_cmp_lt_u32 s{S_T}, 128')
    e(f's_cselect_b32 s{S_T+1}, s{S_P}, s{S_T+1}')
    e(f's_lshl_b32 s{S_T+1}, s{S_T+1}, 7')
    e(f's_add_u32 s1, s{S_T}, s{S_T+1}')
    e(f's_lshl_b32 s{S_T+1}, s{S_W}, 1')
    e(f's_add_u32 s{S_T}, s1, s{S_T+1}')
    e('v_lshrrev_b32 v36, 5, v0')
    e(f'v_add_u32 v36, s{S_T}, v36')
    e('v_and_b32 v37, 31, v0')
    e('v_mul_u32_u24 v38, 1280, v36')
    e(f'v_lshl_add_u32 v{LNA}, v37, 4, v38')
    e(f'v_mov_b32 v39, {OOB}')
    e(f'v_add_u32 v38, 1024, v{LNA}')
    e('v_cmp_gt_u32 s[62:63], 16, v37')
    e('s_nop 1')
    e(f'v_cndmask_b32 v{LNA+1}, v39, v38, s[62:63]')

def setup_late(b):
    e = b.e
    e('v_lshrrev_b32 v36, 1, v32')
    e('v_xor_b32 v36, v36, v33')
    e('v_lshlrev_b32 v36, 4, v36')
    e('v_lshl_add_u32 v36, v32, 7, v36')
    e(f'v_add_u32 v{VA_P}, s{S_W8K}, v36')
    e(f'v_xor_b32 v{VA_P+1}, 64, v{VA_P}')
    for k in (1, 2):
        e(f'v_add_u32 v{VA_P+2*k}, {k*0x10000}, v{VA_P}')
        e(f'v_add_u32 v{VA_P+2*k+1}, {k*0x10000}, v{VA_P+1}')
    e('v_lshl_add_u32 v38, v33, 3, v34')
    e('v_lshlrev_b32 v38, 8, v38')
    e('v_lshl_add_u32 v38, v35, 3, v38')
    e('v_and_b32 v36, 1, v33')
    e('v_lshl_add_u32 v36, v36, 2, v34')
    e(f'v_lshl_add_u32 v{VA_T}, v36, 5, v38')
    for cb in range(1, 8): e(f'v_xor_b32 v{VA_T+cb}, {32*cb}, v{VA_T}')
    e('v_and_b32 v37, 31, v0')
    e('v_lshrrev_b32 v36, 5, v0')
    e(f's_lshl_b32 s{S_T}, s{S_W}, 5')
    e(f's_add_u32 s{S_T}, s{S_T}, {LN_LDS}')
    e(f'v_lshl_add_u32 v36, v36, 4, s{S_T}')
    e(f'v_lshl_add_u32 v{LNA+2}, v37, 7, v36')
    e(f's_lshl_b32 s{S_T}, s{S_W}, 10')
    e(f's_add_u32 s{S_T}, s{S_T}, {LN_LDS}')
    e(f'v_add_u32 v{LNA+3}, s{S_T}, v{V_L16}')
    e('v_lshrrev_b32 v36, 5, v0')
    e('v_bfe_u32 v37, v0, 3, 2')
    e('v_and_b32 v38, 7, v0')
    e('v_lshlrev_b32 v36, 10, v36')
    e('v_lshl_add_u32 v36, v37, 8, v36')
    e('v_lshl_add_u32 v36, v38, 4, v36')
    e(f's_lshr_b32 s{S_T}, s1, 4')
    e(f's_mul_i32 s{S_T}, s{S_T}, 20480')
    e(f's_and_b32 s{S_T+1}, s1, 8')
    e(f's_lshl_b32 s{S_T+1}, s{S_T+1}, 4')
    e(f's_add_u32 s{S_T}, s{S_T}, s{S_T+1}')
    e(f's_lshl_b32 s{S_T+1}, s{S_W}, 11')
    e(f's_add_u32 s{S_T}, s{S_T}, s{S_T+1}')
    e(f'v_add_u32 v{LNA+4}, s{S_T}, v36')
    e(f's_lshl_b32 s{S_T}, s{S_H}, 20')
    e(f's_lshl_b32 s{S_T+1}, s{S_P}, 2')
    e(f's_add_u32 s{S_T+1}, s{S_T+1}, s{S_W}')
    e(f's_lshl_b32 s{S_T+1}, s{S_T+1}, 14')
    e(f's_add_u32 s{S_T}, s{S_T}, s{S_T+1}')
    e(f's_add_u32 s{S_T}, s{S_T}, {KV_OFF}')
    e(f'v_add_u32 v{VA_ST}, s{S_T}, v{V_L16}')
    for i in range(5):
        e(f'v_add_u32 v36, {64*i}, v0')
        e(f'v_mul_u32_u24 v37, 6554, v36')
        e(f'v_lshrrev_b32 v37, 16, v37')
        e(f'v_mul_u32_u24 v38, 10, v37')
        e(f'v_sub_u32 v36, v36, v38')
        e(f'v_mul_u32_u24 v37, 1280, v37')
        e(f'v_lshl_add_u32 v{VA_WD+i}, v36, 4, v37')
    e(f's_mul_i32 s{S_T}, s{S_W}, 5120')
    e(f's_add_u32 s{S_WTL}, s{S_T}, {WT_LDS}')
    e('v_lshl_add_u32 v36, v33, 2, v34')
    e('v_mul_u32_u24 v36, 160, v36')
    e(f'v_add_u32 v36, s{S_WTL}, v36')
    e(f'v_lshl_add_u32 v{VA_WP}, v35, 4, v36')
    e(f'v_lshl_add_u32 v{VA_WS}, v35, 3, v36')
    for rnd in range(2):
        R = WT_S[rnd]
        e(f's_lshl_b32 s51, s2, 2')
        e(f's_add_u32 s51, s51, s{S_W}')
        if rnd: e('s_add_u32 s51, s51, 1024')
        e('s_lshr_b32 s52, s51, 3')
        e('s_and_b32 s53, s51, 7')
        e('s_cmp_lt_u32 s52, 128')
        e(f's_cselect_b32 s{R}, s{S_WO}, s{S_W2}')
        e(f's_cselect_b32 s{R+1}, s{S_WO+1}, s{S_W2+1}')
        e(f's_cselect_b32 s{R+2}, s{S_WO+2}, s{S_W2+2}')
        e(f's_mov_b32 s{R+3}, 0x20000')
        e(f's_and_b32 s{R+4}, s52, 127')
        e(f's_mul_i32 s{R+4}, s{R+4}, {32*1280}')
        e('s_mul_i32 s3, s53, 160')
        e(f's_add_u32 s{R+4}, s{R+4}, s3')
        e(f's_mul_i32 s53, s53, {ZS}')
        e('s_add_u32 s53, s53, s52')
        e('s_mul_i32 s53, s53, 5120')
        e(f's_add_u32 s53, s53, {WT_OFF}')
        e('s_cmp_lt_u32 s51, 1456')
        e(f's_cselect_b32 s{R+4}, s{R+4}, {OOB}')
        e(f's_cselect_b32 s{R+5}, s53, {OOB}')
        e(f's_add_u32 s{WT_S2[rnd]}, s{R+5}, 4096')
    e(f's_lshl_b32 s51, s{S_P}, 2')
    e(f's_add_u32 s51, s51, s{S_W}')
    e(f's_lshl_b32 s51, s51, 1')
    e(f's_sub_u32 s52, 126, s51')
    e(f's_mul_i32 s{S_SX}, s51, 20480')
    e(f's_mul_i32 s{S_SX+2}, s52, 20480')
    e(f's_mul_i32 s{S_SZ}, s51, {ZS*1024}')
    e(f's_mul_i32 s{S_SZ+2}, s52, {ZS*1024}')
    e(f's_add_u32 s{S_SZ}, s{S_SZ}, {Z_OFF}')
    e(f's_add_u32 s{S_SZ+2}, s{S_SZ+2}, {Z_OFF}')
    for k in (0, 2):
        e(f's_add_u32 s{S_SX+k+1}, s{S_SX+k}, {20480}')
        e(f's_add_u32 s{S_SZ+k+1}, s{S_SZ+k}, {ZS*1024}')
    e(f's_add_u32 s51, s{S_H}, 1')
    e(f's_lshr_b32 s52, s51, 2')
    e(f's_min_u32 s52, s52, 5')
    e(f's_sub_u32 s{S_HC}, s{S_H}, s52')
    e(f's_and_b32 s51, s51, 3')
    e(f's_cmp_lt_u32 s{S_H}, 20')
    e(f's_cselect_b32 s51, s51, 1')
    e(f's_cmp_eq_u32 s51, 0')
    e(f's_cselect_b32 s{S_HC}, 0x10000, s{S_HC}')
    e(f'v_lshl_or_b32 v36, s{S_W}, 6, v0')
    e(f'v_cmp_eq_u32 vcc, 0, v36')
    e(f'v_mov_b32 v37, 0')
    e(f'v_mov_b32 v39, {OOB}')
    e(f'v_cndmask_b32 v{V_SIG}, v39, v37, vcc')

def xcc_val():
    return [mk('s_getreg_b32 s51, hwreg(HW_REG_XCC_ID, 0, 4)'), mk('s_mul_i32 s52, s51, s51'), mk('s_lshl_b32 s52, s52, 10'),
            mk('s_lshl_b32 s51, s51, 4'), mk('s_add_u32 s51, s51, s52'), mk('s_add_u32 s51, s51, 1')]
def kv_off(r): return [mk(f's_lshl_b32 s{r}, s{S_H}, 8'), mk(f's_add_u32 s{r}, s{r}, {C_KV}')]
S_PLC = 62

GA = 112
def warm_setup(b):
    e = b.e
    e('s_lshr_b32 s51, s2, 3')
    e(f's_lshl_b32 s51, s51, 2')
    e(f's_add_u32 s51, s51, s{S_W}')
    e('s_and_b32 s52, s2, 7')
    e('v_lshrrev_b32 v36, 3, v0')
    e('v_and_b32 v37, 7, v0')
    e('v_lshlrev_b32 v37, 7, v37')
    e('v_lshl_add_u32 v38, v36, 13, v37')
    e('s_lshl_b32 s53, s52, 10')
    e('v_add_u32 v38, s53, v38')
    e('s_and_b32 s3, s51, 63')
    e('s_lshl_b32 s3, s3, 16')
    e('s_add_u32 s53, s3, 0x100000')
    e('s_cmp_lt_u32 s51, 64')
    e(f's_cselect_b32 s3, s3, {OOB}')
    e(f's_cselect_b32 s53, {OOB}, s53')
    e(f'v_add_u32 v{GA}, s3, v38')
    e(f'v_add_u32 v{GA+4}, s53, v38')
    e('s_lshl_b32 s3, s51, 16')
    e(f'v_add_u32 v{GA+1}, s3, v38')
    e('v_lshl_add_u32 v38, v36, 10, v37')
    e('s_lshl_b32 s3, s52, 18')
    e('s_lshl_b32 s53, s51, 13')
    e('s_add_u32 s3, s3, s53')
    e('s_cmp_lt_u32 s51, 32')
    e(f's_cselect_b32 s3, s3, {OOB}')
    e(f'v_add_u32 v{GA+2}, s3, v38')
    e('v_lshrrev_b32 v36, 2, v0')
    e('v_and_b32 v37, 3, v0')
    e('v_mul_u32_u24 v36, 3456, v36')
    e('v_lshl_add_u32 v36, v37, 7, v36')
    e('s_min_u32 s3, s52, 5')
    e('s_lshl_b32 s52, s52, 2')
    e('s_sub_u32 s52, s52, s3')
    e('s_lshl_b32 s52, s52, 7')
    e('s_sub_u32 s3, s51, 80')
    e(f's_mul_i32 s53, s3, {16*3456}')
    e('s_add_u32 s52, s52, s53')
    e('s_cmp_lt_u32 s3, 40')
    e(f's_cselect_b32 s52, s52, {OOB}')
    e(f'v_add_u32 v{GA+3}, s52, v36')
def warm(n):
    sr = srd((S_WUV, S_WQ, S_CKV, S_W1, S_WUK)[n])
    return mk(f'buffer_load_dword v{GA+n}, v{GA+n}, {sr}, 0 offen')

def ln_loads():
    return [mk(f'buffer_load_dwordx4 {vr(LNR)}, v{LNA}, {srd(S_X)}, 0 offen'),
            mk(f'buffer_load_dwordx4 {vr(LNR+4)}, v{LNA}, {srd(S_X)}, 0 offen offset:512'),
            mk(f'buffer_load_dwordx4 {vr(LNR+8)}, v{LNA+1}, {srd(S_X)}, 0 offen')]

def ln_compute():
    b = Block('ln'); e = b.e
    X = LNX; T = LNT
    def red32(v, t):
        for r in (8, 4, 2, 1):
            e(f'v_add_f32_dpp v{v}, v{v}, v{v} row_ror:{r} row_mask:0xf bank_mask:0xf')
        e(f'v_mov_b32 v{t}, v{v}')
        e(f'v_permlane16_swap_b32 v{v}, v{t}')
        e(f'v_add_f32 v{v}, v{v}, v{t}')
    for k in range(12):
        e(f'v_lshlrev_b32 v{X+2*k}, 16, v{LNR+k}')
        e(f'v_and_b32 v{X+2*k+1}, 0xffff0000, v{LNR+k}')
    e(f'v_add_f32 v{T}, v{X}, v{X+1}')
    e(f'v_add_f32 v{T+1}, v{X+2}, v{X+3}')
    for k in range(4, 24): e(f'v_add_f32 v{T+(k&1)}, v{T+(k&1)}, v{X+k}')
    e(f'v_add_f32 v{T}, v{T}, v{T+1}')
    red32(T, T+1)
    e(f'v_mul_f32 v{T}, {1.0/640!r}, v{T}')
    for k in range(16, 24): e(f'v_cndmask_b32 v{X+k}, v{T}, v{X+k}, s[62:63]')
    e(f'v_sub_f32 v{T+2}, v{X}, v{T}')
    e(f'v_mul_f32 v{T+1}, v{T+2}, v{T+2}')
    for k in range(1, 24):
        e(f'v_sub_f32 v{T+2+(k&1)}, v{X+k}, v{T}')
        e(f'v_fmac_f32 v{T+1}, v{T+2+(k&1)}, v{T+2+(k&1)}')
    red32(T+1, T+2)
    e(f'v_mul_f32 v{T+1}, {1.0/640!r}, v{T+1}')
    e(f'v_cvt_pk_bf16_f32 v{T}, v{T}, v{T+1}')
    e(f'v_and_b32 v{T+1}, 0xffff0000, v{T}')
    e(f'v_lshlrev_b32 v{T}, 16, v{T}')
    e(f'v_add_f32 v{T+1}, 0x3727c5ac, v{T+1}')
    e(f'v_cvt_pk_bf16_f32 v{T+1}, v{T+1}, v{T+1}')
    e(f'v_lshlrev_b32 v{T+1}, 16, v{T+1}')
    e(f'v_sqrt_f32 v{T+1}, v{T+1}')
    e(f'v_cvt_pk_bf16_f32 v{T+1}, v{T+1}, v{T+1}')
    e(f'v_lshlrev_b32 v{T+1}, 16, v{T+1}')
    e(f'v_rcp_f32 v{T+1}, v{T+1}')
    for k in range(12):
        a = X + 2*k
        e(f'v_sub_f32 v{a}, v{a}, v{T}')
        e(f'v_sub_f32 v{a+1}, v{a+1}, v{T}')
        e(f'v_cvt_pk_bf16_f32 v{a}, v{a}, v{a+1}')
        e(f'v_and_b32 v{a+1}, 0xffff0000, v{a}')
        e(f'v_lshlrev_b32 v{a}, 16, v{a}')
        e(f'v_mul_f32 v{a}, v{a}, v{T+1}')
        e(f'v_mul_f32 v{a+1}, v{a+1}, v{T+1}')
        e(f'v_cvt_pk_bf16_f32 v{LNR+k}, v{a}, v{a+1}')
    return b.ins
def ln_writes():
    return [mk(f'ds_write_b128 v{LNA+2}, {vr(LNR+4*j)} offset:{j*4096}', obj=ldsobj('LN', LN_LDS, 12288)) for j in range(3)]
def ln_reads(): return [mk(f'ds_read_b128 {vr(LNR+4*n)}, v{LNA+3} offset:{n*4096}', obj='LN') for n in range(3)]
def ln_stores():
    L = []
    for n in range(3):
        L.append(mk(f's_mov_b32 s55, {XN_OFF + n*8192}'))
        if n == 2: L += [mk(f's_cmp_lt_u32 s{S_W}, 2'), mk(f's_cselect_b32 s55, s55, {OOB}')]
        L.append(mk(f'buffer_store_dwordx4 {vr(LNR+4*n)}, v{LNA+4}, {srd(S_WS)}, s55 offen {SC1}', grp='xn'))
    return L

def wide_dma(sr, row0, lds, grp, obj):
    L = []; ldsobj(obj, lds, 32768)
    for hf in range(2):
        L.append(mk(f's_mov_b32 s54, {(row0 + hf*64)*8192}'))
        L.append(mk(f's_add_u32 m0, s{S_W4K}, {lds + hf*16384}'))
        for n in range(4):
            L.append(mk(f'buffer_load_dwordx4 v{VA_W+n}, {srd(sr)}, s54 offen offset:{n*1024} lds', grp=grp, obj=obj))
    return L
def w_dma(st): return wide_dma(S_WUK if st < 4 else S_WUV, (st & 3) * 128, W_REG[st] * 32768, f'w{st}', f'W{st}')
def p_dma(q):
    L = []
    for hf in range(2):
        L.append(mk(f's_mov_b32 s54, {hf*32768 + q*128}'))
        L.append(mk(f's_add_u32 m0, s{S_W8K}, {P_REG[q]*32768 + hf*4096}'))
        for n in range(4):
            L.append(mk(f'buffer_load_dwordx4 v{VA_CK+n}, {srd(S_CKV)}, s54 offen offset:{n*1024} lds', grp=f'p{q}', obj=ldsobj(f'P{q}', P_REG[q]*32768, 32768, 8192)))
    return L
def p_regs(q): return [f'a{ck(rb, 2*q+s2)+i}' for rb in range(4) for s2 in range(2) for i in range(4)]
def p_reads(q):
    R = P_REG[q]
    return [waitgrp(f'p{q}')] + [mk(f'ds_read_b128 {ar(ck(rb, 2*q+s2))}, v{VA_P + 2*(R>>1) + s2} offset:{(R&1)*32768 + rb*2048}', obj=f'P{q}')
            for s2 in range(2) for rb in range(4)]
def wt_dma(rnd):
    L = []; R = WT_S[rnd]
    for i in range(5):
        L.append(mk(f's_add_u32 m0, s{S_WTL}, {i*1024}'))
        L.append(mk(f'buffer_load_dwordx4 v{VA_WD+i}, s[{R}:{R+3}], s{R+4} offen lds', grp=f'wt{rnd}', obj=ldsobj(f'T{rnd}', WT_LDS, 20480, 5120)))
    return L
def wt_reads(rnd):
    L = []
    for nb in range(5):
        for j2 in range(2):
            if nb < 4: L.append(mk(f'ds_read_b64_tr_b16 {vr(WTR+nb*4+j2*2, 2)}, v{VA_WP} offset:{j2*2560 + 64*(nb>>1) + 8*(nb&1)}', obj=f'T{rnd}'))
            else: L.append(mk(f'ds_read_b64_tr_b16 {vr(WTR+nb*4+j2*2, 2)}, v{VA_WS} offset:{j2*2560 + 128}', obj=f'T{rnd}'))
    return L
def wt_stores(rnd):
    L = []; R = WT_S[rnd]
    for nb in range(5):
        if nb < 4: L.append(mk(f'buffer_store_dwordx4 {vr(WTR+nb*4)}, v{V_L16}, {srd(S_WS)}, s{R+5} offen offset:{nb*1024} {SC1}', grp='wtst'))
        else: L.append(mk(f'buffer_store_dwordx4 {vr(WTR+nb*4)}, v{V_L16}, {srd(S_WS)}, s{WT_S2[rnd]} offen {SC1}', grp='wtst'))
    return L

class Img:
    def __init__(self): self.base = {}
    def reads(self, areg, base, nxt, buf, sstride, obj):
        cur = self.base.get(areg, 0)
        rel = base - cur
        assert 0 <= rel and rel + 3*sstride + 1024 < 65536, (areg, base, cur)
        L = []
        for s4 in range(4):
            for j2 in range(2):
                L.append(mk(f'ds_read_b64_tr_b16 {vr(WF + buf*16 + s4*4 + j2*2, 2)}, v{areg} offset:{rel + s4*sstride + j2*1024}', obj=obj))
        if nxt is not None and not (0 <= nxt - cur and nxt - cur + 3*sstride + 1024 < 65536):
            L.append(mk(f'v_add_u32 v{areg}, {hex((nxt - cur) & 0xffffffff)}, v{areg}'))
            self.base[areg] = nxt
        return L

def cvt4(t, d0, d1):
    return [mk(f'v_cvt_pk_bf16_f32 v{t}, v{d0}, v{d0+1}'), mk(f'v_cvt_pk_bf16_f32 v{t+1}, v{d0+2}, v{d0+3}'),
            mk(f'v_cvt_pk_bf16_f32 v{t+2}, v{d1}, v{d1+1}'), mk(f'v_cvt_pk_bf16_f32 v{t+3}, v{d1+2}, v{d1+3}')]
KVSC = os.environ.get('KVSC', '')
def kv_store(t, off):
    if KVSC == 'none': return [mk(f's_mov_b32 s55, {off}')]
    return [mk(f's_mov_b32 s55, {off}'), mk(f'buffer_store_dwordx4 {vr(t)}, v{VA_ST}, {srd(S_WS)}, s55 offen {KVSC}', grp='kv')]

class Str(Slots):
    def ch(self, items, k, minstep=0, before=None):
        k, left = self.chain(items, k, minstep); assert not left, (len(left), left[0].text)
        assert before is None or k < before, (k, before)
        return k
    def dma(self, items, k, step=4):
        return self.ch(items, max(k - 1, 0), step) + step
    def reads(self, items, k0, after_barrier):
        pos = (1, 2, 3, 4, 6, 8, 10, 12, 13) if after_barrier or k0 < 3 else (-3, -1, 1, 3, 5, 7, 9, 11, 12)
        for j, x in enumerate(items): self.put(k0 + pos[j], x)

def a_group(sl, st, cb, buf):
    for rb in range(4):
        for s4 in range(4):
            s = (st & 3) * 4 + s4
            d = vr(acca(cb, rb)); w = vr(WF + buf*16 + s4*4); a = ar(ck(rb, s))
            cin = '0' if s == 0 else d
            if st < 4: sl.add(f'{MF} {d}, {w}, {a}, {cin}')
            else: sl.add(f'{MF} {d}, {a}, {w}, {cin}')
def barrier_at(sl, k, grps):
    for g in grps: sl.put(k, waitgrp(g))
    sl.put(k, waitlds())
    sl.put(k, mk('s_barrier'))

def gen_common(b, img, hooks):
    e = b.e
    setup(b)
    b.waitlds()
    late = Block('late'); setup_x(late); warm_setup(late); setup_late(late)
    lq = list(late.ins)
    burst = p_dma(0) + w_dma(0) + p_dma(1) + p_dma(2)
    bind(burst)
    for x in burst:
        b.add(x)
        if x.kind == 'vmem':
            n = 0
            while lq and (n < 9 or any(r in ('scc', 'vcc') for r in lq[0].rd)):
                b.add(lq.pop(0)); n += 1
    for x in lq: b.add(x)
    WM = os.environ.get('WARM', '240|13')
    for c in WM.split('|')[0]: b.add(warm(int(c)))
    hooks.get('p2', lambda b: None)(b)
    for x in p_reads(0) + p_reads(1): b.add(x)
    b.waitgrp('w0')
    b.waitlds()
    e('s_barrier')
    wreg = lambda st: W_REG[st] * 32768 if st < 8 else BQ[0]
    for x in img.reads(VA_T, wreg(0), wreg(1), 0, 8192, 'W0'): b.add(x)
    sl = Str(); base = {}; n = 0
    for st in range(7):
        base[st] = len(sl)
        for cb in range(8):
            buf = n & 1; k0 = len(sl)
            a_group(sl, st, cb, buf)
            nst, ncb = (st, cb + 1) if cb < 7 else (st + 1, 0)
            if ncb == 0: barrier_at(sl, k0, [f'w{nst}'] + (['xn'] if st == 3 else []))
            sl.reads(img.reads(VA_T + ncb, wreg(nst), wreg(nst + 1), buf ^ 1, 8192, f'W{nst}'), k0, ncb == 0)
            n += 1
    base[7] = len(sl)
    end = lambda st: base[st] + 7*16 + 3
    kw = sl.ch(ln_writes(), end(2) + 9, before=base[3] + 4)
    sl.put(base[3] + 10, waitlds()); sl.put(base[3] + 10, mk('s_barrier'))
    kk = sl.ch(ln_reads(), base[3] + 10)
    k = sl.dma(w_dma(1) + p_dma(3) + ln_loads() + p_dma(4), 2)
    k = sl.dma([waitreg(p_regs(2))] + p_dma(5) + [warm(int(c)) for c in WM.split('|')[1]], k)
    k = sl.dma(w_dma(2), max(k, end(0)))
    k = sl.dma([waitreg(p_regs(3))] + p_dma(6), k)
    k = sl.dma([waitreg(p_regs(4))] + p_dma(7), k)
    for q, k0, dl in ((2, base[0] + 40, None), (3, base[0] + 94, base[1]), (4, base[1] + 40, None), (5, base[1] + 76, base[1] + 112),
                      (6, base[2] + 44, None), (7, base[2] + 78, base[2] + 112)):
        if q == 6: k = sl.dma(w_dma(3) + w_dma(4), max(k, end(1)), 4)
        sl.ch(p_reads(q), k0, before=dl)
    k = kw6 = sl.dma(wt_dma(0) + w_dma(5) + w_dma(6), max(k, end(2)), 5)
    kd = sl.dma(w_dma(7), max(k, end(3)), 5)
    sl.ch([mk('s_lshl_b32 s53, s2, 8'), mk(f's_add_u32 s53, s53, {CNT_OFF}'), mk('s_cmp_lt_u32 s2, 48'), mk(f's_cselect_b32 s53, s53, {OOB}'),
           mk(f'v_mov_b32 v{LNT}, 0'), mk(f'buffer_store_dword v{LNT}, v{V_SIG}, {srd(S_WS)}, s53 offen sc1', grp='xn')], 40)
    kk = sl.ch(ln_stores(), kk + 6, 2, before=base[3] + 48)
    sl.ch(ln_compute(), base[1] + 16, before=end(2) + 9)
    sl.ch(xcc_val() + signal([mk(f's_lshl_b32 s53, s{S_H}, 2')], STG[0], 's51', S_DBG), max(end(3), kw6 + 1))
    k = kk + 2; kst = base[3] + 2*16 + 12; stores = []
    for pair in range(4):
        for rb in range(4):
            f = pair*4 + rb
            k = sl.ch(cvt4(PK + f*4, acca(2*pair, rb), acca(2*pair+1, rb)), max(k, base[3] + (2*pair + 2)*16 + 4), before=base[4] + max(2*pair*16, 1))
            kst = sl.ch(kv_store(PK + f*4, (rb*4 + pair)*1024), max(kst, k + 1)) + 21
            stores.append(kst)
    assert kst - 21 < base[7], (kst, base)
    kd = sl.dma(q_dma(0), max(end(4), kd), 5)
    k = sl.ch([waitgrp('wt0')] + wt_reads(0), max(base[5] + 8, stores[5]))
    k = sl.ch([waitreg([f'v{WTR+i}' for i in range(20)])] + wt_dma(1), max(k + 6, kd), 3)
    kk = sl.ch(wt_stores(0), k + 1, 6)
    sl.ch(b_setup_dma(), k + 1, before=end(5))
    px = Poll('xn', S_DBG, 32, 4, 8, (STG[1], STG[1] + 1, STG[1] + 2), mask=15)
    sl.ch([mk('s_mov_b32 s1, 0')] + px.issue(), base[6] + 2*16 + 8)
    sl.raw(base[6] + 7*16 - 1, px.check())
    sl.ch([mk(f's_lshl_b32 s1, s{S_H}, 2'), mk(f'buffer_load_dword v{STG[0]}, v{V_SIG}, {srd(S_DBG)}, s1 offen sc1')], end(6))
    k = sl.dma(h_dma(0) + h_dma(1), max(k + 2, end(5) + 2), 5)
    k = sl.dma(x_loads(0, 0)[:3], max(k, end(6)), 4)
    if 'common' in hooks: hooks['common'](sl, base)
    sl.emit(b)

def b_setup_dma():
    L = []; e = lambda t: L.append(mk(t))
    V = VB_HD
    e(f'v_bfe_u32 v29, v{V_L16}, 7, 2')
    e(f'v_lshrrev_b32 v22, 9, v{V_L16}')
    e(f'v_lshl_add_u32 v29, v22, 3, v29')
    e(f'v_mul_u32_u24 v29, 3456, v29')
    e(f'v_bfe_u32 v22, v{V_L16}, 5, 2')
    e(f'v_lshrrev_b32 v23, 8, v{V_L16}')
    e(f'v_xor_b32 v22, v22, v23')
    e(f'v_lshl_add_u32 v29, v22, 5, v29')
    e(f'v_and_b32 v22, 16, v{V_L16}')
    e(f'v_add_u32 v29, v29, v22')
    e(f's_mul_i32 s51, s{S_W}, {32*3456}')
    e(f's_lshl_b32 s52, s{S_HC}, 7')
    e(f's_add_u32 s51, s51, s52')
    e(f'v_add_u32 v{V}, s51, v29')
    for n in range(1, 4): e(f'v_add_u32 v{V+n}, {(4*(n&1) + 16*(n>>1))*3456 - n*1024}, v{V}')
    return L
def b_setup_tr():
    L = []; e = lambda t: L.append(mk(t))
    T = VB_HT
    e(f'v_bfe_u32 v31, v{V_L16}, 6, 2')
    e(f'v_bfe_u32 v{T[2]}, v{V_L16}, 8, 1')
    e(f'v_lshrrev_b32 v{T[3]}, 9, v{V_L16}')
    e(f'v_lshl_add_u32 v{T[0]}, v{T[2]}, 2, v31')
    e(f'v_lshl_add_u32 v{T[0]}, v{T[3]}, 4, v{T[0]}')
    e(f'v_lshlrev_b32 v{T[0]}, 7, v{T[0]}')
    e(f'v_bfe_u32 v{T[3]}, v{V_L16}, 4, 2')
    e(f'v_lshl_add_u32 v{T[0]}, v{T[3]}, 3, v{T[0]}')
    e(f'v_lshrrev_b32 v31, 1, v31')
    e(f'v_lshl_add_u32 v31, v{T[2]}, 1, v31')
    e(f'v_lshl_add_u32 v{T[0]}, v31, 5, v{T[0]}')
    e(f'v_add_u32 v{T[0]}, {BH[0]}, v{T[0]}')
    for cb in range(1, 4): e(f'v_xor_b32 v{T[cb]}, {32*cb}, v{T[0]}')
    return L

def q_dma(sg): return wide_dma(S_WQ, sg * 128, BQ[sg], f'b{sg}', f'Q{sg}')
def h_dma(sg):
    L = [mk(f's_mov_b32 s54, {sg*128*3456}'), mk(f's_add_u32 m0, s{S_W4K}, {BH[sg]}')]
    for n in range(4):
        L.append(mk(f'buffer_load_dwordx4 v{VB_HD+n}, {srd(S_W1)}, s54 offen offset:{n*1024} lds', grp=f'b{sg}', obj=ldsobj(f'H{sg}', BH[sg], 16384)))
    return L
def xreg(sg, rb, s4): return (sg & 1) * 64 + (rb * 4 + s4) * 4
def x_loads(sg, rb):
    L = [mk(f's_add_u32 s54, s{S_SX+rb}, {XN_OFF + sg*4096}')]
    for s4 in range(4):
        L.append(mk(f'buffer_load_dwordx4 {ar(xreg(sg, rb, s4))}, v{V_L16}, {srd(S_WS)}, s54 offen offset:{s4*1024} sc1', grp='x'))
    return L

def silu_ops(d, t):
    return [mk(f'v_mul_f32 v{t}, 0xbfb8aa3b, v{d}'), mk(f'v_exp_f32 v{t}, v{t}'), mk(f'v_add_f32 v{t}, 1.0, v{t}'),
            mk(f'v_rcp_f32 v{t}, v{t}'), mk(f'v_mul_f32 v{d}, v{d}, v{t}')]

def gen_var(b, img, withH, tag, hooks):
    for cb in range(4): img.base[VB_HT[cb]] = BH[0]
    sl = Str(); base = {}
    n = 56
    cbs = list(range(12)) if withH else list(range(4, 12))
    seq = [('A', 7, cb) for cb in range(8)] + [('B', sg, cb) for sg in range(5) for cb in cbs]
    def reads(ph, st, cb, buf):
        if ph == 'A': return img.reads(VA_T + cb, W_REG[7]*32768, BQ[0], buf, 8192, 'W7')
        if cb >= 4: return img.reads(VA_T + cb - 4, BQ[st], BQ[st+1] if st < 4 else None, buf, 8192, f'Q{st}')
        return img.reads(VB_HT[cb], BH[st], BH[st+1] if st < 4 else None, buf, 4096, f'H{st}')
    gstart = {}
    for i, (ph, st, cb) in enumerate(seq):
        buf = n & 1; k0 = len(sl)
        gstart[(ph, st, cb)] = k0
        base.setdefault((ph, st), k0)
        if ph == 'A': a_group(sl, st, cb, buf)
        else:
            for rb in range(4):
                for s4 in range(4):
                    d = vr(accb(cb, rb))
                    sl.add(f'{MF} {d}, {vr(WF + buf*16 + s4*4)}, {ar(xreg(st, rb, s4))}, {"0" if st == 0 and s4 == 0 else d}')
        if i + 1 < len(seq):
            nph, nst, ncb = seq[i + 1]
            if (nph, nst) != (ph, st):
                barrier_at(sl, k0, [f'b{nst}'] + (['kv', 'wtst'] if (ph, st) == ('B', 1) else []))
            sl.reads(reads(nph, nst, ncb, buf ^ 1), k0, (nph, nst) != (ph, st))
        n += 1
    GL = len(cbs) * 16
    A7 = base[('A', 7)]; B = lambda sg: base[('B', sg)]
    endB = lambda sg: B(sg) + GL - 16 + 3
    xl = x_loads(0, 0)
    k = sl.dma([xl[0]] + xl[3:] + [x for rb in range(1, 4) for x in x_loads(0, rb)] + q_dma(1), A7 + 1, 4)
    k = sl.dma([x for rb in range(4) for x in x_loads(1, rb)], k, 5)
    kk = sl.ch([waitgrp('wt1')] + wt_reads(1), A7 + 3*16 + 8)
    sl.ch(wt_stores(1), kk + 6, 3, before=B(0) if withH else None)
    if withH: sl.ch(b_setup_tr(), kk + 1, before=A7 + 7*16)
    sl.ch([mk(f'v_readfirstlane_b32 s3, v{STG[0]}')] + xcc_val() + [mk('s_lshl_b32 s51, s51, 3'), mk(f's_cmp_eq_u32 s{S_W}, 0'), mk('s_cselect_b32 s3, s3, s51'),
           mk(f's_sub_u32 s{S_PLC}, s3, s51')], A7 + 20, before=A7 + 36)
    span = (gstart[('B', 0, 10)] - (A7 + 36)) // 16
    kst = A7 + 36
    for pair in range(4):
        for f in range(4):
            cb, kg = 2*pair + (f & 1), f >> 1
            t = STG[f & 1]
            kst = max(kst, A7 + (2*pair + 2)*16 + 4)
            dl = gstart[('B', 0, 4 + 2*pair)]
            kk = sl.ch(cvt4(t, acca(cb, 2*kg), acca(cb, 2*kg+1)) + kv_store(t, 524288 + (kg*8 + cb)*1024), min(kst, dl - 8*(4 - f)), before=dl)
            kst = max(kst + span, kk + 1)
    for sg in range(2, 5):
        k0 = (A7 + 7*16 + 3) if sg == 2 else endB(sg - 3)
        k = sl.dma(q_dma(sg) + (h_dma(sg) if withH else []), max(k, k0), 5)
        for rb in range(4):
            k = sl.dma(x_loads(sg, rb), max(k, B(sg - 2) + GL - 16 + 4*rb + 5), 4)
    chk = [mk(f's_cmp_eq_u32 s{S_PLC}, 0'), mk(f's_cbranch_scc1 L_samedie{tag}'), mk('buffer_wbl2 sc1'), mk('s_waitcnt vmcnt(0)'), mk(f'L_samedie{tag}:')]
    chk[-2].noauto = True
    sl.raw(endB(1), chk)
    sl.ch(signal(kv_off(53), 31), endB(1) + 1)
    tail = []
    def run(items, k):
        nonlocal tail
        if tail: tail += items; return k
        k, left = sl.chain(items, k)
        tail += left
        return k
    k = 0
    work = []
    if withH:
        for pair in range(2):
            for rb in range(4):
                d0, d1 = accb(2*pair, rb), accb(2*pair+1, rb)
                L = []
                regs = [d0+i for i in range(4)] + [d1+i for i in range(4)]
                tm = [STG[1]+i for i in range(4)]
                for h4 in range(2):
                    ops = [silu_ops(regs[4*h4+i], tm[i]) for i in range(4)]
                    for j in range(5): L += [o[j] for o in ops]
                L += cvt4(STG[0], d0, d1)
                L += [mk(f's_lshl_b32 s55, s{S_HC}, 11'), mk(f's_add_u32 s55, s55, s{S_SZ+rb}'), mk(f's_add_u32 s55, s55, {(128 + pair)*1024}'),
                      mk(f'buffer_store_dwordx4 {vr(STG[0])}, v{V_L16}, {srd(S_WS)}, s55 offen {SC1}', grp='h')]
                work.append((gstart[('B', 4, 2*pair+1)] + 16 + 4, L))
    qw = []
    for ds in range(4):
        for rb in range(4):
            d0, d1 = accb(4+2*ds, rb), accb(5+2*ds, rb)
            L = [mk(f'v_mul_f32 v{r}, {QSCALE!r}, v{r}') for r in [d0+i for i in range(4)] + [d1+i for i in range(4)]] + cvt4(d0, d0, d1)
            qw.append((gstart[('B', 4, 5+2*ds)] + 16 + 4, L))
    hooks.get('var', lambda *a: None)(sl, base, B, endB, GL)
    for st0, L in work + qw:
        k = run(L, min(max(k, st0), len(sl)))
    sl.emit(b)
    for x in tail: b.add(x)
```

```python
import re

RANGE = re.compile(r'^(-|\|)?(abs\()?([vas])\[(\d+):(\d+)\]\)?\|?$')
SINGLE = re.compile(r'^(-|\|)?(abs\()?([vas])(\d+)\)?\|?$')
TRANS = ('v_exp_f32', 'v_log_f32', 'v_rcp_f32', 'v_rsq_f32', 'v_sqrt_f32', 'v_sin_f32', 'v_cos_f32')

def regs_of(tok):
    tok = tok.strip()
    m = RANGE.match(tok)
    if m: return [f'{m.group(3)}{i}' for i in range(int(m.group(4)), int(m.group(5)) + 1)]
    m = SINGLE.match(tok)
    if m: return [f'{m.group(3)}{m.group(4)}']
    if tok in ('vcc', 'exec'): return [tok]
    if tok in ('vcc_lo', 'vcc_hi'): return ['vcc']
    if tok in ('exec_lo', 'exec_hi'): return ['exec']
    if tok == 'm0': return ['m0']
    return []

class I:
    __slots__ = ('text', 'op', 'kind', 'rd', 'wr', 'srcC', 'ab', 'grp', 'wvm', 'wlg', 'nop', 'pseudo', 'arg', 'sdata', 'dpp', 'noauto', 'obj')
    def __init__(self, text, grp=None, pseudo=None, arg=None):
        self.text = text; self.grp = grp; self.pseudo = pseudo; self.arg = arg
        self.wvm = None; self.wlg = None; self.nop = 0
        self.rd = set(); self.wr = set(); self.srcC = set(); self.ab = set(); self.sdata = set()
        self.dpp = False; self.noauto = False; self.obj = None
        if pseudo: self.op = pseudo; self.kind = 'pseudo'; return
        t = text.split(';')[0].strip()
        if t.endswith(':') or t.startswith('.'):
            self.op = 'label'; self.kind = 'label'; return
        sp = t.split(None, 1)
        op = sp[0]; self.op = op
        rest = sp[1] if len(sp) > 1 else ''
        ops = [x.strip() for x in rest.split(',')] if rest else []
        mods = ''
        if ops:
            l = ops[-1].split(None, 1)
            if len(l) > 1: ops[-1] = l[0]; mods = l[1]
        R = lambda k: set(regs_of(ops[k])) if k < len(ops) else set()
        allfrom = lambda k: set(r for o in ops[k:] for r in regs_of(o))
        if op.startswith('v_mfma'):
            self.kind = 'mfma'; self.wr = R(0); self.ab = R(1) | R(2); self.srcC = R(3); self.rd = self.ab | self.srcC
        elif op.startswith('ds_read'):
            self.kind = 'ds'; self.wr = R(0); self.rd = allfrom(1)
        elif op.startswith('ds_write'):
            self.kind = 'ds'; self.rd = allfrom(0)
        elif op.startswith('ds_'):
            self.kind = 'ds'; self.wr = R(0); self.rd = allfrom(1)
        elif op.startswith('buffer_load') or op.startswith('global_load'):
            self.kind = 'vmem'
            if re.search(r'\blds\b', mods): self.rd = allfrom(0) | {'m0'}
            else: self.wr = R(0); self.rd = allfrom(1)
        elif op.startswith('buffer_store'):
            self.kind = 'vmem'; self.rd = allfrom(0); self.sdata = R(0)
        elif op.startswith('global_store'):
            self.kind = 'vmem'; self.rd = allfrom(0); self.sdata = R(1)
        elif op.startswith('buffer_atomic') or op.startswith('global_atomic'):
            self.kind = 'vmem'; self.rd = allfrom(0)
            if 'sc0' in mods: self.wr = R(0)
        elif op in ('buffer_inv', 'buffer_wbl2'):
            self.kind = 'vmem'
        elif op.startswith('s_load') or op in ('s_memtime', 's_memrealtime'):
            self.kind = 'smem'; self.wr = R(0); self.rd = allfrom(1)
        elif op in ('s_waitcnt', 's_nop', 's_barrier', 's_sleep', 's_setprio', 's_endpgm', 's_branch'):
            self.kind = 'sctl'
        elif op.startswith('s_cbranch'):
            self.kind = 'sctl'
            self.rd = {'scc'} if 'scc' in op else ({'vcc'} if 'vcc' in op else {'exec'})
        elif op.startswith('s_cmp') or op.startswith('s_bitcmp'):
            self.kind = 'salu'; self.wr = {'scc'}; self.rd = allfrom(0)
        elif op.startswith('s_'):
            self.kind = 'salu'; self.wr = R(0); self.rd = allfrom(1)
            if op.startswith('s_cselect') or op.startswith('s_addc') or op.startswith('s_subb'): self.rd |= {'scc'}
            if 'saveexec' in op: self.wr |= {'exec'}; self.rd |= {'exec'}
            if not (op.startswith('s_getreg') or op.startswith('s_mov') or op.startswith('s_cselect') or op.startswith('s_mul') or op.startswith('s_getpc') or op.startswith('s_movk')):
                self.wr |= {'scc'}
            if op in ('s_addk_i32',): self.rd |= R(0)
        elif op.startswith('v_'):
            self.kind = 'trans' if op.replace('_e32', '').replace('_e64', '') in TRANS else 'valu'
            self.wr = R(0); self.rd = allfrom(1)
            if op.startswith('v_cmpx'): self.wr |= {'exec'}
            if op.startswith('v_fmac') or op.startswith('v_dot2c') or op.startswith('v_writelane'): self.rd |= R(0)
            if op.startswith('v_permlane'): self.rd |= R(0); self.wr |= R(1)
            if op.startswith('v_add_co') or op.startswith('v_sub_co') or op.startswith('v_addc_co'):
                self.wr |= R(1); self.rd = allfrom(2)
            if 'dpp' in op or 'row_' in mods or 'quad_perm' in mods:
                self.dpp = True
                self.rd |= R(0)
        else:
            raise ValueError('unknown op: ' + text)

class Block:
    def __init__(self, name):
        self.name = name; self.ins = []
    def e(self, text, grp=None):
        for line in text.split('\n'):
            line = line.strip()
            if line: self.ins.append(I(line, grp=grp))
        return self.ins[-1]
    def add(self, ins): self.ins.append(ins)
    def mark(self, name): self.ins.append(I('', pseudo='mark', arg=name))
    def waitgrp(self, name, lag=0): self.ins.append(I('', pseudo='waitgrp', arg=(name, lag)))
    def waitall(self): self.ins.append(I('', pseudo='waitall'))
    def waitlds(self): self.ins.append(I('', pseudo='waitlds'))

def mk(text, grp=None, obj=None):
    x = I(text, grp=grp); x.obj = obj; return x
def mark(name): return I('', pseudo='mark', arg=name)
def waitgrp(name, lag=0): return I('', pseudo='waitgrp', arg=(name, lag))
def waitlds(): return I('', pseudo='waitlds')
def waitreg(regs):
    x = I('', pseudo='waitreg'); x.rd = set(regs); return x

WAITCNT = re.compile(r'(vmcnt|lgkmcnt)\((\d+)\)')

def _need(q, regs):
    n = None
    for k, (dst, _g, _m) in enumerate(q):
        if dst & regs: n = len(q) - 1 - k
    return n

def autowait(paths):
    changed = True; rounds = 0
    while changed:
        changed = False; rounds += 1
        assert rounds < 20
        for path in paths:
            seq = [x for b in path for x in b.ins]
            vq = []; lq = []; marks = {}; smem = set()
            n = len(seq)
            def setw(ins, vm, lg):
                nonlocal changed
                if vm is not None:
                    vm = min(vm, 63)
                    if ins.wvm is None or vm < ins.wvm: ins.wvm = vm; changed = True
                if lg is not None:
                    lg = min(lg, 15)
                    if ins.wlg is None or lg < ins.wlg: ins.wlg = lg; changed = True
            prev_real = None
            for k, ins in enumerate(seq):
                if prev_real is not None and prev_real.kind == 'mfma' and ins.kind not in ('label',):
                    regs = set(); j = k
                    while j < n:
                        x = seq[j]
                        if x.kind == 'label' or (x.kind == 'sctl' and x.op not in ('s_nop',)) : break
                        if x.kind != 'pseudo': regs |= x.rd | x.wr
                        if x.kind == 'mfma' or j - k > 6: break
                        j += 1
                    setw(ins, _need(vq, regs), _need(lq, regs) if not smem else None)
                regs = ins.rd | ins.wr
                if ins.kind == 'pseudo':
                    if ins.pseudo == 'mark': marks[ins.arg] = marks.get(ins.arg, 0) + 1
                    elif ins.pseudo == 'waitgrp':
                        name, lag = ins.arg; cur = marks.get(name, 0); nn = None
                        for kk, (_d, g, m) in enumerate(vq):
                            if g == name and m <= cur - lag: nn = len(vq) - 1 - kk
                        setw(ins, nn, None)
                    elif ins.pseudo == 'waitall': setw(ins, 0, 0)
                    elif ins.pseudo == 'waitlds': setw(ins, None, 0)
                    elif ins.pseudo == 'waitreg': setw(ins, _need(vq, regs), 0 if smem else _need(lq, regs))
                else:
                    lg = _need(lq, regs)
                    if smem & regs: lg = 0
                    elif smem and lg is not None: lg = 0
                    setw(ins, _need(vq, regs), lg)
                wv, wl = ins.wvm, ins.wlg
                if ins.op == 's_waitcnt' and not ins.noauto:
                    for c, v in WAITCNT.findall(ins.text):
                        if c == 'vmcnt': wv = int(v) if wv is None else min(wv, int(v))
                        else: wl = int(v) if wl is None else min(wl, int(v))
                if wv is not None and len(vq) > wv: vq = vq[len(vq) - wv:] if wv else []
                if wl is not None:
                    if wl == 0: smem = set(); lq = []
                    elif len(lq) > wl: lq = lq[len(lq) - wl:]
                if ins.op == 'buffer_wbl2': pass
                elif ins.kind == 'vmem': vq.append((set(ins.wr), ins.grp, marks.get(ins.grp, 0)))
                elif ins.kind == 'ds': lq.append((set(ins.wr), None, 0))
                elif ins.kind == 'smem': smem |= ins.wr; lq.append((set(), None, 0))
                if ins.kind not in ('pseudo',): prev_real = ins

def _states(ins):
    if ins.kind in ('pseudo', 'label'):
        n = 0
    elif ins.op == 's_nop': n = int(ins.text.split()[1]) + 1
    else: n = 1
    return n

def hazards(paths, fix=True, verbose=False):
    added = []
    changed = True
    while changed:
        changed = False
        for path in paths:
            seq = [x for b in path for x in b.ins]
            for k, ins in enumerate(seq):
                if ins.kind in ('pseudo', 'label'): continue
                need = 0; why = ''
                dist = ins.nop + (1 if (ins.wvm is not None or ins.wlg is not None) else 0)
                j = k - 1
                isv = ins.kind in ('valu', 'trans')
                while j >= 0 and dist < 20:
                    p = seq[j]
                    req = 0
                    pv = p.kind in ('valu', 'trans')
                    vw = {r for r in p.wr if r[0] in 'va' and r != 'vcc'}
                    sw = {r for r in p.wr if r[0] == 's' and r != 'scc' or r == 'vcc'}
                    if pv:
                        if ins.kind == 'mfma' and vw & ins.rd: req = max(req, 2)
                        if ins.kind == 'mfma' and 'exec' in p.wr: req = max(req, 4)
                        if ins.dpp and vw & ins.rd: req = max(req, 2)
                        if ins.dpp and 'exec' in p.wr: req = max(req, 5)
                        if ins.op.startswith('v_permlane') and vw & ins.rd: req = max(req, 2)
                        if ins.op.startswith(('v_readlane', 'v_readfirstlane')) and vw & ins.rd: req = max(req, 1)
                        if ins.op.startswith(('v_readlane', 'v_readfirstlane', 'v_writelane', 'v_permlane')) and 'exec' in p.wr: req = max(req, 4)
                        if ins.kind == 'vmem' and sw & ins.rd: req = max(req, 5)
                        if isv and sw & ins.rd: req = max(req, 2)
                        if ins.kind in ('salu', 'sctl', 'smem') and sw & ins.rd: req = max(req, 4)
                        if p.kind == 'trans' and ins.kind != 'trans' and vw & (ins.rd | ins.wr): req = max(req, 1)
                    if p.kind == 'mfma':
                        ps = 4 if '16x16' in p.op else 8
                        t_ab = 8 if ps == 4 else 12; t_c = 6 if ps == 4 else 10; t_war = 3 if ps == 4 else 7
                        if ins.kind == 'mfma':
                            if p.wr & ins.ab: req = max(req, t_ab)
                            if p.wr & ins.srcC and p.wr != ins.srcC: req = max(req, t_c)
                            if p.wr & ins.wr and not (p.wr == ins.srcC and p.wr == ins.wr): req = max(req, t_ab)
                        else:
                            if p.wr & (ins.rd | ins.wr): req = max(req, t_ab)
                            if isv and p.srcC & ins.wr: req = max(req, t_war)
                    if p.kind == 'vmem' and len(p.sdata) >= 3 and p.sdata & ins.wr: req = max(req, 2)
                    if p.kind == 'salu' and 'm0' in p.wr and 'm0' in ins.rd: req = max(req, 1)
                    if p.kind == 'salu' and 'exec' in p.wr and (ins.dpp): req = max(req, 1)
                    if req - dist > need: need = req - dist; why = p.text
                    dist += _states(p) + p.nop + (1 if (p.wvm is not None or p.wlg is not None) else 0)
                    j -= 1
                if need > 0:
                    ins.nop += need; changed = True
                    added.append((ins.text, why, need))
    if verbose:
        for a in added: print('NOP', a)
    return added

OBJS = {}
def ldsobj(name, lo, size, part=None): OBJS[name] = (lo, lo + size, part); return name
def check_lds(paths):
    for path in paths:
        vq = []; lq = []; nb = 0
        wdone = {}; rdone = {}; wpend = {}; rpend = {}; dead = set()
        def retire(q, n, isv):
            while len(q) > n:
                x = q.pop(0)
                if x is None: continue
                o, w = x
                if w: wpend[o] -= 1; wdone[o] = nb
                else: rpend[o] -= 1; rdone[o] = nb
        for ins in (x for b in path for x in b.ins):
            wv, wl = ins.wvm, ins.wlg
            if ins.op == 's_waitcnt' and not ins.noauto:
                for c, v in WAITCNT.findall(ins.text):
                    if c == 'vmcnt': wv = int(v) if wv is None else min(wv, int(v))
                    else: wl = int(v) if wl is None else min(wl, int(v))
            if wv is not None: retire(vq, wv, True)
            if wl is not None: retire(lq, wl, False)
            if ins.op == 's_barrier': nb += 1
            o = ins.obj
            if o:
                lo, hi, part = OBJS[o]
                isw = ins.kind == 'vmem' or ins.op.startswith('ds_write')
                if isw:
                    dead.discard(o)
                    for x, (l2, h2, p2) in OBJS.items():
                        if x == o and not (x in rdone or rpend.get(x)): continue
                        if l2 < hi and lo < h2 and (x in rdone or rpend.get(x) or x in wdone or wpend.get(x)):
                            assert not rpend.get(x), f'{ins.text}: overwrites {x} while reads are in flight'
                            if x in ('H0', 'H1') and x not in rdone and not wpend.get(x) and wdone[x] < nb: dead.add(x)
                            assert x in rdone or x in dead, f'{ins.text}: overwrites {x} before it was read'
                            same = part is not None and p2 == part and l2 == lo
                            assert same or x in dead or rdone[x] < nb, f'{ins.text}: overwrites {x} without a barrier after its reads'
                            if x != o: dead.add(x)
                            else: rdone.pop(x)
                    wpend[o] = wpend.get(o, 0) + 1
                else:
                    assert o not in dead, f'{ins.text}: reads {o} after it was overwritten'
                    assert o in wdone and not wpend.get(o), f'{ins.text}: reads {o} before its writes are done'
                    assert part is not None or wdone[o] < nb, f'{ins.text}: reads {o} without a barrier after its writes'
                    rpend[o] = rpend.get(o, 0) + 1
            if ins.op == 'buffer_wbl2': pass
            elif ins.kind == 'vmem':
                vq.append((o, True) if o else None); retire(vq, 63, True)
            elif ins.kind in ('ds', 'smem'): lq.append((o, ins.op.startswith('ds_write')) if o else None)

def render(blocks):
    out = []
    for b in blocks:
        for ins in b.ins:
            w = []
            if ins.wvm is not None: w.append(f'vmcnt({ins.wvm})')
            if ins.wlg is not None: w.append(f'lgkmcnt({ins.wlg})')
            if w: out.append('s_waitcnt ' + ' '.join(w))
            n = ins.nop
            while n > 0:
                m = min(n, 16); out.append(f's_nop {m-1}'); n -= m
            if ins.kind != 'pseudo': out.append(ins.text)
    return '\n'.join(out) + '\n'

BINDS = []
def bind(items):
    last = {}
    for it in items:
        for r in it.rd:
            if r in last: BINDS.append((it, r, last[r]))
        for r in it.wr:
            last[r] = it
def check_binds(paths):
    want = {}
    for c, r, p in BINDS: want.setdefault(id(c), []).append((r, p))
    for path in paths:
        last = {}
        for ins in (x for b in path for x in b.ins):
            for r, p in want.get(id(ins), []):
                assert last.get(r) is p, f'binding broken: {ins.text} reads {r} from {last.get(r).text if last.get(r) else None}, wanted {p.text}'
            for r in ins.wr: last[r] = ins

class Slots:
    def __init__(self):
        self.m = []; self.sc = []; self.mem = []; self.va = []; self.post = {}
    def add(self, text):
        self.m.append(I(text)); self.sc.append([]); self.mem.append([]); self.va.append([]); return len(self.m) - 1
    def __len__(self): return len(self.m)
    def _cls(self, ins):
        return 'sc' if ins.kind in ('salu', 'sctl', 'pseudo', 'smem', 'label') else ('mem' if ins.kind in ('ds', 'vmem') else 'va')
    def put(self, k, ins):
        if isinstance(ins, str): ins = I(ins)
        assert 0 <= k < len(self.m), (k, len(self.m), ins.text)
        getattr(self, self._cls(ins))[k].append(ins); return k
    def used(self, k):
        u = 0
        for x in self.mem[k]: u += 8 if x.kind == 'vmem' else 4
        for x in self.va[k]: u += 8 if x.kind == 'trans' else 4
        return u
    def fits(self, k, ins):
        c = self._cls(ins)
        if c == 'sc': return ins.kind == 'pseudo' or not any(x.kind != 'pseudo' for x in self.sc[k])
        if c == 'mem':
            if self.mem[k]: return False
            return self.used(k) + (8 if ins.kind == 'vmem' else 4) <= 8
        return self.used(k) + (8 if ins.kind == 'trans' else 4) <= 8
    def place(self, ins, k):
        if isinstance(ins, str): ins = I(ins)
        while k < len(self.m) and not self.fits(k, ins): k += 1
        if k >= len(self.m): return None
        return self.put(k, ins)
    def chain(self, items, k, minstep=0):
        order = {'sc': 0, 'mem': 1, 'va': 2}
        prev = None; lastmem = None
        items = [I(x) if isinstance(x, str) else x for x in items]
        bind(items)
        for n, it in enumerate(items):
            kk = k; c = self._cls(it)
            if prev is not None:
                if 'm0' in prev.wr and 'm0' in it.rd: kk = k + 1
                if order[c] < order[self._cls(prev)]: kk = k + 1
                if c == 'mem' and self._cls(prev) == 'mem': kk = k + 1
            if c == 'mem' and lastmem is not None: kk = max(kk, lastmem + minstep)
            r = self.place(it, kk)
            if r is None: return k, list(items[n:])
            if c == 'mem': lastmem = r
            k = r; prev = it
        return k, []
    def raw(self, k, items):
        self.post.setdefault(k, []).extend(I(x) if isinstance(x, str) else x for x in items)
    def emit(self, blk):
        for k in range(len(self.m)):
            blk.add(self.m[k])
            for x in self.sc[k] + self.mem[k] + self.va[k] + self.post.get(k, []): blk.add(x)
```

```python
import os
from common import *
from ab import qreg, Str, SC1, kv_off

V_CUR, V_NXT, V_DMA = 2, 3, 24
def S(kb2, qb): return 32 + (kb2*4 + qb)*4
def P(par, qb): return 64 + (par*4 + qb)*4
def CM(par, kb2, qb): return (96 + (kb2*4 + qb)*4) if par == 0 else ((144, 176)[kb2] + qb*4)
L_, NEGM, TMP = 208, 212, 216
TMP2 = 240
def O(db, qb): return (db*4 + qb)*4
def FR(buf, i): return 128 + (buf*4 + i)*4
sT, sNA, sNB, sNT, sKO, sVO, sSL, sEV, sFLAG, sREDO = 56, 57, 58, 59, 60, 61, 62, 63, 64, 65
sTRI = 68
sKB = 75 + 0
K0_LDS = 128 * 1024
NINF = '0xff800000'
THR = 0x53800000

def setup_scalar():
    L = []; e = lambda t: L.append(mk(t))
    e(f's_lshr_b32 s3, s{S_W}, 1')
    e(f's_lshl_b32 s{sNA}, s{S_P}, 1')
    e(f's_sub_u32 s{sNT}, 32, s{sNA}')
    e(f's_sub_u32 s{sNB}, s{sNT}, s3')
    e(f's_add_u32 s{sNA}, s{sNA}, s3')
    e(f's_add_u32 s{sNA}, s{sNA}, 1')
    e(f'v_add_u32 v{V_DMA}, s{S_W4K}, v{V_L16}')
    return L
def reset_stream():
    L = []; e = lambda t: L.append(mk(t))
    e(f's_lshl_b32 s{sVO}, s{S_H}, 20')
    e(f's_add_u32 s{sKO}, s{sVO}, {KV_OFF + 8192}')
    e(f's_add_u32 s{sVO}, s{sVO}, {KV_OFF + 524288}')
    e(f's_mov_b32 s{sSL}, s{S_W4K}')
    return L
def k0_dma():
    L = []; e = lambda t, g=None: L.append(mk(t, grp=g))
    e(f's_lshr_b32 s54, s{S_W4K}, 1')
    e(f's_add_u32 m0, s54, {K0_LDS}')
    e(f's_add_u32 s54, s54, s{sKO}')
    e(f's_sub_u32 s54, s54, 8192')
    for n in range(2): e(f'buffer_load_dwordx4 v{V_L16}, {srd(S_WS)}, s54 offen offset:{n*1024} sc1 lds', 'st')
    return L
def dma_k(n): return mk(f'buffer_load_dwordx4 v{V_DMA}, {srd(S_WS)}, s{sKO} offen offset:{n*1024} sc1 lds', grp='st')
def dma_v(n): return mk(f'buffer_load_dwordx4 v{V_DMA}, {srd(S_WS)}, s{sVO} offen offset:{n*1024} sc1 lds', grp='st')
def m0_k(): return mk(f's_mov_b32 m0, s{sSL}')
def m0_v(): return mk(f's_add_u32 m0, s{sSL}, 16384')
def advance():
    return [mk(f's_add_u32 s{sKO}, s{sKO}, 16384'), mk(f's_add_u32 s{sVO}, s{sVO}, 16384'),
            mk(f's_add_u32 s{sSL}, s{sSL}, 32768'), mk(f's_and_b32 s{sSL}, s{sSL}, 0x1ffff')]
def full_batch():
    return [mark('st'), m0_k()] + [dma_k(n) for n in range(4)] + [m0_v()] + [dma_v(n) for n in range(4)] + advance()

def exp_ops(par, kb2, qb, i):
    s = S(kb2, qb)
    E = mk(f'v_exp_f32 v{s+i}, v{s+i}')
    A = mk(f'v_add_f32 v{L_+qb}, v{L_+qb}, v{s+i}')
    C = mk(f'v_cvt_pk_bf16_f32 v{P(par, qb) + 2*kb2 + (i>>1)}, v{s+i-1}, v{s+i}') if i & 1 else None
    return E, A, C
def exp_block_plain(b, par, kb2, qb):
    ops = [exp_ops(par, kb2, qb, i) for i in range(4)]
    for E, A, C in ops: b.add(E)
    for E, A, C in ops:
        b.add(A)
        if C: b.add(C)

NPRE = 3

def body(b, qbs, last=False):
    nq = len(qbs); G = 4 * nq
    sl = Str()
    def qk(par, buf0):
        for kb2 in range(2):
            for qb in qbs:
                for ds in range(4):
                    d = vr(S(kb2, qb))
                    sl.add(f'{MF} {d}, {ar(FR(buf0 + kb2, ds))}, {vr(qreg(qb, ds))}, {vr(CM(par, kb2, qb)) if ds == 0 else d}')
    def pv(par, buf0):
        for db in range(8):
            for qb in qbs:
                o = ar(O(db, qb))
                sl.add(f'{MF} {o}, {ar(FR(buf0 + (db >> 2), db & 3))}, {vr(P(par, qb))}, {o}')
    def rd(buf, i, reg, off): return mk(f'ds_read_b128 {ar(FR(buf, i))}, v{reg} offset:{off}')
    kf = lambda kh, kb2, i: kh*8192 + (kb2*4 + i)*1024
    vf = lambda vh, hf, i: 16384 + vh*8192 + (hf*4 + i)*1024
    blocks = [(kb2, qb) for kb2 in range(2) for qb in qbs]
    tau = 2 * nq
    npend = tau // 4
    qk(1, 0); pv(0, 2)
    if not last:
        qk(0, 0); pv(1, 2)
        reads = [[rd(2, i, V_CUR, vf(0, 0, i)) for i in range(4)], [rd(3, i, V_CUR, vf(0, 1, i)) for i in range(4)],
                 [rd(0, i, V_CUR, kf(1, 0, i)) for i in range(4)], [rd(1, i, V_CUR, kf(1, 1, i)) for i in range(4)],
                 [rd(2, i, V_CUR, vf(1, 0, i)) for i in range(4)], [rd(3, i, V_CUR, vf(1, 1, i)) for i in range(4)],
                 [rd(0, i, V_NXT, kf(0, 0, i)) for i in range(4)], [rd(1, i, V_NXT, kf(0, 1, i)) for i in range(4)]]
        stream = [(0, *bl) for bl in blocks[-npend:]] + [(1, *bl) for bl in blocks] + [(0, *bl) for bl in blocks[:-npend]]
    else:
        reads = [[rd(2, i, V_CUR, vf(0, 0, i)) for i in range(4)], [rd(3, i, V_CUR, vf(0, 1, i)) for i in range(4)],
                 [rd(0, i, V_CUR, vf(1, 0, i)) for i in range(4)], [rd(1, i, V_CUR, vf(1, 1, i)) for i in range(4)]]
        stream = [(0, *bl) for bl in blocks[-npend:]] + [(1, *bl) for bl in blocks]
    npair = len(sl) // 2
    rstep = G // 8
    for g, R in enumerate(reads):
        for i, x in enumerate(R): sl.put(g*G + 2*i*rstep + 1, x)
    rest = []
    for n, (par, kb2, qb) in enumerate(stream):
        if 4*n >= npair: rest.append((par, kb2, qb)); continue
        for i in range(4):
            E, A, C = exp_ops(par, kb2, qb, i)
            pr = 4*n + i
            sl.put(2*pr, E); sl.put(2*pr + 1, A)
            if C: sl.put(2*pr + 1, C)
    if not last:
        N = len(sl); kb = 6*G
        step = max(2, (G * 5 // 8) & ~1)
        seq = [dma_k(n) for n in range(NPRE, 4)] + [m0_v()] + [dma_v(n) for n in range(4)]
        k = 2
        for x in seq:
            if x.kind == 'vmem': sl.put(k, x); k += step
            else: sl.put(k - 2, x)
        adv = advance() + [mk(f's_add_u32 s3, s{sT}, 3'), mk(f's_cmp_lt_u32 s3, s{sNT}'),
                           mk(f's_cselect_b32 s{sKO}, s{sKO}, {OOB}'), mk(f's_cselect_b32 s{sVO}, s{sVO}, {OOB}'), m0_k()]
        k = k - step + 1
        for x in adv: sl.put(k, x); k += 1
        assert k < kb, (k, kb)
        sl.put(kb, waitgrp('st', 1)); sl.put(kb, mk('s_barrier')); sl.put(kb, mark('st'))
        k = kb + 2
        for n in range(NPRE): sl.put(k, dma_k(n)); k += step
        assert k - step < N
        sl.put(N - 5, mk(f'v_mov_b32 v{V_CUR}, v{V_NXT}')) if False else None
        sl.raw(N - 1, [mk(f'v_mov_b32 v{V_CUR}, v{V_NXT}'), mk(f'v_add_u32 v{V_NXT}, 0x8000, v{V_NXT}'), mk(f'v_and_b32 v{V_NXT}, 0x1ffff, v{V_NXT}')])
        sl.put(N - 3, mk(f's_add_u32 s{sT}, s{sT}, 1'))
        sl.put(N - 2, mk(f's_cmp_lg_u32 s{sT}, s{sEV}'))
        sl.emit(b)
    else:
        sl.emit(b)
        b.e(f's_cmp_ge_u32 s{S_W}, 2')
        b.e('s_cbranch_scc0 L_at_nobar')
        b.e('s_waitcnt vmcnt(0)')
        b.e('s_barrier')
        b.e('L_at_nobar:')
        for par, kb2, qb in rest: exp_block_plain(b, par, kb2, qb)
        sl = Str(); pv(1, 0); sl.emit(b)

def fill_cm(b, par, qbs, val=None):
    for kb2 in range(2):
        for qb in qbs:
            for i in range(4): b.e(f'v_mov_b32 v{CM(par, kb2, qb)+i}, {val if val else "v%d" % (NEGM+qb)}')
def diag_cm(b, par, q0):
    b.e(f'v_mov_b32 v{TMP}, {NINF}')
    for i in range(4):
        m = f's[{sTRI+2*i}:{sTRI+2*i+1}]'
        b.e(f'v_cndmask_b32 v{CM(par, 0, q0)+i}, v{NEGM+q0}, v{TMP}, {m}')
        b.e(f'v_mov_b32 v{CM(par, 0, q0+1)+i}, v{NEGM+q0+1}')
        b.e(f'v_mov_b32 v{CM(par, 1, q0)+i}, v{TMP}')
        b.e(f'v_cndmask_b32 v{CM(par, 1, q0+1)+i}, v{NEGM+q0+1}, v{TMP}, {m}')
cnt = [0]
def mask(b, half, q0):
    cnt[0] += 1; n = cnt[0]
    b.e(f's_bitcmp1_b32 s{S_W}, 0')
    diag_if_odd = (half == 1) == (q0 == 0)
    b.e(f's_cbranch_scc{0 if diag_if_odd else 1} L_mk{n}a')
    diag_cm(b, half, q0)
    if half == 1:
        b.e(f's_branch L_mk{n}b')
        b.e(f'L_mk{n}a:')
        fill_cm(b, 1, (q0, q0+1), NINF)
        b.e(f'L_mk{n}b:')
    else:
        b.e(f'L_mk{n}a:')

def epilogue(b, q0):
    e = b.e
    for qb in (q0, q0 + 1):
        l = L_ + qb; t = TMP + (qb & 1)
        e(f'v_mov_b32 v{t}, v{l}')
    for qb in (q0, q0 + 1):
        l = L_ + qb; t = TMP + (qb & 1)
        e(f'v_permlane16_swap_b32 v{l}, v{t}')
        e(f'v_add_f32 v{l}, v{l}, v{t}')
        e(f'v_mov_b32 v{t}, v{l}')
    for qb in (q0, q0 + 1):
        l = L_ + qb; t = TMP + (qb & 1)
        e(f'v_permlane32_swap_b32 v{l}, v{t}')
        e(f'v_add_f32 v{l}, v{l}, v{t}')
    e(f'v_max_f32 v{TMP+2}, v{L_+q0}, v{L_+q0+1}')
    e(f'v_cmp_nle_f32 vcc, v{TMP+2}, v{TMP+3}')
    for qb in (q0, q0 + 1): e(f'v_rcp_f32 v{TMP + (qb&1)}, v{L_+qb}')
    e(f's_or_b32 s3, vcc_lo, vcc_hi')
    e(f's_or_b32 s{sFLAG}, s{sFLAG}, s3')
    n = 0
    for qb in (q0, q0 + 1):
        e(f's_lshl_b32 s55, s{S_H}, 12')
        e(f's_add_u32 s55, s55, s{S_SZ+qb}')
        for ds in range(4):
            t = TMP2 + (n & 1) * 8; n += 1
            for hb in range(2):
                for i in range(4): e(f'v_accvgpr_read_b32 v{t+4*hb+i}, a{O(2*ds+hb, qb)+i}')
            for i in range(8): e(f'v_mul_f32 v{t+i}, v{t+i}, v{TMP + (qb&1)}')
            for i in range(4): e(f'v_cvt_pk_bf16_f32 v{t+i}, v{t+2*i}, v{t+2*i+1}')
            e(f'buffer_store_dwordx4 {vr(t)}, v{V_L16}, {srd(S_WS)}, s55 offen offset:{ds*1024} {SC1}', grp='ctx')

def xmax(b, v, t):
    for sw in ('16', '32'):
        b.e(f'v_mov_b32 v{t}, v{v}')
        b.e(f'v_permlane{sw}_swap_b32 v{v}, v{t}')
        b.e(f'v_max_f32 v{v}, v{v}, v{t}')

def gen(hooks):
    hk = lambda n, b: hooks.get(n, lambda b: None)(b)
    pro = Block('at_pro'); e = pro.e
    e('L_at_start:')
    hk('at0', pro)
    e(f'v_lshrrev_b32 v{TMP}, 6, v{V_L16}')
    e(f'v_and_b32 v{TMP}, 12, v{TMP}')
    e(f'v_bfe_u32 v{TMP+1}, v{V_L16}, 4, 4')
    for i in range(4):
        e(f'v_add_u32 v{TMP+2}, {i}, v{TMP}')
        e(f'v_cmp_gt_u32 s[{sTRI+2*i}:{sTRI+2*i+1}], v{TMP+2}, v{TMP+1}')
    e(f'v_mov_b32 v{TMP+3}, {hex(THR)}')
    e(f'v_mov_b32 v{V_CUR}, v{V_L16}')
    e(f'v_add_u32 v{V_NXT}, {K0_LDS}, v{V_L16}')
    e(f's_mov_b32 s{sT}, 0')
    e(f's_mov_b32 s{sFLAG}, 0')
    for qb in range(4): e(f'v_mov_b32 v{L_+qb}, 0')
    e(f's_cmp_lg_u32 s{sREDO}, 0')
    e(f's_cbranch_scc1 L_at_havem')
    for qb in range(4): e(f'v_mov_b32 v{NEGM+qb}, 0')
    e('L_at_havem:')
    fill_cm(pro, 0, range(4))
    e(f's_cmp_eq_u32 s{sNA}, 1')
    e(f's_cbranch_scc0 L_at_nomask')
    mask(pro, 0, 0)
    e('L_at_nomask:')
    for i in range(128): e(f'v_accvgpr_write_b32 a{i}, 0')
    pro.waitgrp('st', 1)
    pro.waitlds()
    e('s_barrier')
    hk('at1', pro)
    for kb2 in range(2):
        for i in range(4): e(f'ds_read_b128 {ar(FR(2+kb2, i))}, v{V_NXT} offset:{(kb2*4+i)*1024}')
    for kb2 in range(2):
        for i in range(4): e(f'ds_read_b128 {ar(FR(kb2, i))}, v{V_CUR} offset:{(kb2*4+i)*1024}')
    pro.mark('st'); pro.add(m0_k())
    e(f'v_add_u32 v{V_NXT}, 0x8000, v{V_L16}')
    for n in range(NPRE): pro.add(dma_k(n))
    for kb2 in range(2):
        for qb in range(4):
            for ds in range(4):
                d = vr(S(kb2, qb))
                e(f'{MF} {d}, {ar(FR(2 + kb2, ds))}, {vr(qreg(qb, ds))}, {vr(CM(0, kb2, qb)) if ds == 0 else d}')
    e(f's_cmp_lg_u32 s{sREDO}, 0')
    e(f's_cbranch_scc1 L_at_havem2')
    for qb in range(4):
        a = S(0, qb); c = S(1, qb); m = NEGM + qb
        e(f'v_max3_f32 v{m}, v{a}, v{a+1}, v{a+2}')
        e(f'v_max3_f32 v{m}, v{m}, v{a+3}, v{c}')
        e(f'v_max3_f32 v{m}, v{m}, v{c+1}, v{c+2}')
        e(f'v_max_f32 v{m}, v{m}, v{c+3}')
    for sw in ('16', '32'):
        for qb in range(4): e(f'v_mov_b32 v{TMP2+qb}, v{NEGM+qb}')
        for qb in range(4): e(f'v_permlane{sw}_swap_b32 v{NEGM+qb}, v{TMP2+qb}')
        for qb in range(4): e(f'v_max_f32 v{NEGM+qb}, v{NEGM+qb}, v{TMP2+qb}')
    for qb in range(4): e(f'v_sub_f32 v{NEGM+qb}, 0, v{NEGM+qb}')
    for kb2 in range(2):
        for qb in range(4):
            for i in range(4): e(f'v_add_f32 v{S(kb2, qb)+i}, v{S(kb2, qb)+i}, v{NEGM+qb}')
    e('L_at_havem2:')
    fill_cm(pro, 0, range(4)); fill_cm(pro, 1, range(4))
    for j in range(6): exp_block_plain(pro, 0, j >> 2, j & 3)
    hk('at2', pro)
    dp = Block('at_disp'); e = dp.e
    e('L_at_disp:')
    e(f's_cmp_eq_u32 s{sT}, 2')
    e('s_cbranch_scc0 L_at_d0')
    e(f's_cmp_eq_u32 s{sREDO}, 0')
    e('s_cbranch_scc0 L_at_d0')
    for x in signal([mk(f's_lshl_b32 s53, s{S_P}, 8'), mk(f's_add_u32 s53, s53, {C_PRE}')], TMP): dp.add(x)
    e('L_at_d0:')
    e(f's_add_u32 s3, s{sT}, 2')
    e(f's_cmp_eq_u32 s3, s{sNB}')
    e('s_cbranch_scc0 L_at_d1')
    mask(dp, 0, 2)
    e('L_at_d1:')
    e(f's_cmp_ge_u32 s{sT}, s{sNA}')
    e('s_cbranch_scc1 L_at_dB')
    e(f's_add_u32 s3, s{sT}, 2')
    e(f's_cmp_eq_u32 s3, s{sNA}')
    e('s_cbranch_scc0 L_at_d2')
    mask(dp, 0, 0)
    e('L_at_d2:')
    e(f's_add_u32 s{sEV}, s{sT}, 1')
    e(f's_cmp_eq_u32 s{sEV}, s{sNA}')
    e('s_cbranch_scc0 L_at_d3')
    mask(dp, 1, 0)
    fill_cm(dp, 0, (0, 1), NINF)
    e('L_at_d3:')
    e(f's_sub_u32 s3, s{sNA}, 2')
    e(f's_max_i32 s{sEV}, s{sEV}, s3')
    e(f's_cmp_lt_u32 s{sT}, 2')
    e(f's_cselect_b32 s3, 2, 64')
    e(f's_min_u32 s{sEV}, s{sEV}, s3')
    dual = Block('at_dual'); dual.e('.p2align 5'); dual.e('L_at_dual:')
    body(dual, (0, 1, 2, 3))
    dual.e('s_cbranch_scc1 L_at_dual')
    dual.e('s_branch L_at_disp')
    dB = Block('at_dB'); e = dB.e
    e('L_at_dB:')
    e(f's_cmp_eq_u32 s{sT}, s{sNA}')
    e('s_cbranch_scc0 L_at_dB2')
    tr = Block('at_tr')
    hk('at3', tr)
    exp_block_plain(tr, 0, 1, 2)
    epilogue(tr, 0)
    dC = Block('at_dC'); e = dC.e
    e('L_at_dB2:')
    e(f's_add_u32 s{sEV}, s{sT}, 1')
    e(f's_cmp_eq_u32 s{sEV}, s{sNB}')
    e('s_cbranch_scc1 L_at_last')
    e(f's_sub_u32 s3, s{sNB}, 2')
    e(f's_max_u32 s{sEV}, s{sEV}, s3')
    e(f's_cmp_lt_u32 s{sT}, 2')
    e(f's_cselect_b32 s3, 2, 64')
    e(f's_min_u32 s{sEV}, s{sEV}, s3')
    single = Block('at_single'); single.e('.p2align 5'); single.e('L_at_single:')
    body(single, (2, 3))
    single.e('s_cbranch_scc1 L_at_single')
    single.e('s_branch L_at_disp')
    last = Block('at_last'); last.e('L_at_last:')
    hk('at_last', last)
    mask(last, 1, 2)
    body(last, (2, 3), last=True)
    hk('at4', last)
    epilogue(last, 2)
    redo = gen_redo()
    dpB = Block('at_disp_toB')
    k = next(i for i, x in enumerate(dp.ins) if x.text == 's_cbranch_scc1 L_at_dB')
    dpB.ins = dp.ins[:k + 1]
    blocks = [pro, dp, dual, dB, tr, dC, single, last]
    tails = [[pro, dp, dual, dual, dual, dp, dual, dpB, dB, tr, dC, single, single, single, dpB, dB, dC, single, dpB, dB, dC, last],
             [pro, dp, dual, dpB, dB, tr, dC, last], [pro, dp, dual, dpB, dB, tr, dC, single, dpB, dB, dC, last]]
    return blocks, tails, redo

def gen_redo():
    b = Block('redo'); e = b.e
    e('L_redo:')
    e('s_waitcnt vmcnt(0) lgkmcnt(0)')
    e('s_barrier')
    e(f's_mov_b32 s{sREDO}, -1')
    for qb in range(4): e(f'v_mov_b32 v{L_+qb}, {NINF}')
    for qb in range(4): e(f'v_mov_b32 v{NEGM+qb}, 0')
    e(f's_lshl_b32 s{sKO}, s{S_H}, 20')
    e(f's_add_u32 s{sKO}, s{sKO}, {KV_OFF}')
    e(f's_lshr_b32 s54, s{S_W4K}, 1')
    e(f's_add_u32 s{sKO}, s{sKO}, s54')
    e(f's_mov_b32 s{sT}, 0')
    e(f's_lshl_b32 s{sVO}, s{S_P}, 2')
    e(f's_add_u32 s{sVO}, s{sVO}, s{S_W}')
    e(f's_sub_u32 s{sSL}, 63, s{sVO}')
    e(f's_lshl_b32 s{sEV}, s{sNT}, 1')
    e('L_redo_loop:')
    e(f's_mov_b32 m0, s54')
    e('s_nop 0')
    for n in range(2): e(f'buffer_load_dwordx4 v{V_L16}, {srd(S_WS)}, s{sKO} offen offset:{n*1024} sc1 lds')
    for q0, sd in ((0, sVO), (2, sSL)):
        e(f's_cmp_eq_u32 s{sT}, s{sd}')
        e(f's_cbranch_scc1 L_redo_d{q0}')
        e(f's_cmp_lt_u32 s{sT}, s{sd}')
        e(f's_cselect_b32 s3, 0, {NINF}')
        fill_cm(b, 0, (q0, q0 + 1), 's3')
        e(f's_branch L_redo_e{q0}')
        e(f'L_redo_d{q0}:')
        diag_cm(b, 0, q0)
        e(f'L_redo_e{q0}:')
    e('s_waitcnt vmcnt(0)')
    e('s_barrier')
    for kb2 in range(2):
        for i in range(4): e(f'ds_read_b128 {ar(FR(kb2, i))}, v{V_L16} offset:{(kb2*4+i)*1024}')
    e('s_waitcnt lgkmcnt(0)')
    e('s_barrier')
    for kb2 in range(2):
        for qb in range(4):
            for ds in range(4):
                d = vr(S(kb2, qb))
                e(f'{MF} {d}, {ar(FR(kb2, ds))}, {vr(qreg(qb, ds))}, {vr(CM(0, kb2, qb)) if ds == 0 else d}')
    e('s_nop 7')
    for qb in range(4):
        for kb2 in range(2):
            a = S(kb2, qb)
            e(f'v_max3_f32 v{L_+qb}, v{L_+qb}, v{a}, v{a+1}')
            e(f'v_max3_f32 v{L_+qb}, v{L_+qb}, v{a+2}, v{a+3}')
    e(f's_add_u32 s{sKO}, s{sKO}, 8192')
    e(f's_add_u32 s{sT}, s{sT}, 1')
    e(f's_cmp_lt_u32 s{sT}, s{sEV}')
    e('s_cbranch_scc1 L_redo_loop')
    for qb in range(4):
        xmax(b, L_ + qb, TMP)
        e(f'v_sub_f32 v{NEGM+qb}, 0, v{L_+qb}')
    e(f'v_add_u32 v{V_DMA}, s{S_W4K}, v{V_L16}')
    for x in reset_stream() + [mark('st')] + k0_dma() + full_batch()[1:] + full_batch(): b.add(x)
    e('s_waitcnt vmcnt(0)')
    e('s_branch L_at_start')
    return b

def b4_hook(sl, base, B, endB, GL, tag):
    pk = Poll('kv', S_WS, 1, 256, 8, (18, 19, 20), sleep=8)
    sl.ch(kv_off(1) + pk.issue(), B(3) + GL // 2)
    sl.ch(setup_scalar() + reset_stream() + [mk(f's_mov_b32 s{sREDO}, 0')], B(3) + 4)
    sl.raw(B(4) - 17, pk.check(tag))
    items = [mark('st')] + k0_dma() + full_batch()[1:] + full_batch()
    n = 0
    for x in items:
        if x.kind == 'vmem':
            x.obj = ldsobj('K0', K0_LDS, 8192) if n < 2 else ldsobj(f'S{(n-2)//8}', ((n-2)//8)*32768, 32768); n += 1
    sl.ch(items, B(4) + 2, 4)
    return
    k = B(4) + 2
    for x in items:
        if x.kind == 'vmem': sl.put(k, x); k += 4
        else:
            sl.put(k, x)
            if x.kind != 'pseudo': k += 1
```

```python
import os
from asmlib import *

NAME = 'parallel_sum__compressed_kv_cla__dense_activation_silu__prompt'
XN_OFF = 0
KV_OFF = 4 << 20
Z_OFF  = 40 << 20
WT_OFF = 64 << 20
WS_BYTES = 1 << 28
OOB = 0x7F000000
ZS = 182

S_WS, S_X, S_CKV, S_WUK, S_WUV, S_WQ, S_W1, S_WO, S_W2, S_OUT = 4, 8, 12, 16, 20, 24, 28, 32, 36, 40
S_DBG = 44
S_H, S_P, S_W = 48, 49, 50
S_T = 51
S_W8K, S_W4K = 66, 67
S_SX, S_SZ = 76, 80
CNT_OFF = 72 << 20
C_KV, C_PRE, C_CTX, C_EX = CNT_OFF, CNT_OFF + 32*256, CNT_OFF + 40*256, CNT_OFF + 48*256
N_CNT = 112
def srd(n): return f's[{n}:{n+3}]'
SIZES = {S_WS: WS_BYTES, S_X: 2048*640*2, S_CKV: 2048*512*2, S_WUK: 512*4096*2, S_WUV: 512*4096*2, S_WQ: 640*4096*2,
         S_W1: 640*1728*2, S_WO: 4096*640*2, S_W2: 1728*640*2, S_OUT: 2048*640*2}
KARG = {S_X: 0, S_CKV: 8, S_WQ: 16, S_WUK: 24, S_WUV: 32, S_WO: 40, S_W1: 56, S_W2: 64, S_OUT: 72, S_WS: 88}
V_L16 = 1

def vr(a, n=4): return f'v[{a}:{a+n-1}]'
def ar(a, n=4): return f'a[{a}:{a+n-1}]'
MF = 'v_mfma_f32_16x16x32_bf16'

def entry(b, srds, endlabel, codebytes):
    b.e(f's_cmp_ge_u32 s2, 256')
    b.e(f's_cbranch_scc1 {endlabel}')
    for s in srds: b.e(f's_load_dwordx2 s[{s}:{s+1}], s[0:1], {KARG[s]}')
    b.e(f's_load_dwordx2 s[{S_DBG}:{S_DBG+1}], s[0:1], 80')
    b.e(f's_getpc_b64 s[52:53]')
    b.e(f's_lshr_b32 s3, s2, 3')
    b.e(f's_lshl_b32 s54, s3, 12')
    b.e(f's_min_u32 s54, s54, {max(0, ((codebytes - 256) // 4096) * 4096 - 4096)}')
    b.e(f'v_lshl_add_u32 v6, v0, 4, s54')
    b.e(f'global_load_dwordx4 v[60:63], v6, s[52:53]')
    b.e(f's_and_b32 s{S_H}, s2, 7')
    b.e(f's_lshl_b32 s{S_H}, s{S_H}, 2')
    b.e(f's_and_b32 s{S_T}, s3, 3')
    b.e(f's_add_u32 s{S_H}, s{S_H}, s{S_T}')
    b.e(f's_lshr_b32 s{S_P}, s3, 2')
    b.e(f'v_lshrrev_b32 v6, 6, v0')
    b.e(f'v_and_b32 v0, 63, v0')
    b.e(f'v_readfirstlane_b32 s{S_W}, v6')
    b.e(f'v_lshlrev_b32 v{V_L16}, 4, v0')
    for s in srds:
        b.e(f's_mov_b32 s{s+2}, {SIZES[s]}')
        b.e(f's_mov_b32 s{s+3}, 0x20000')
    b.e(f's_mov_b32 s{S_DBG+2}, 256')
    b.e(f's_mov_b32 s{S_DBG+3}, 0x20000')
    b.e(f's_lshl_b32 s{S_W8K}, s{S_W}, 13')
    b.e(f's_lshl_b32 s{S_W4K}, s{S_W}, 12')

V_SIG = 0
SPINS = []
def signal(soff_ins, tmp, val='1', sr=None):
    return list(soff_ins) + [mk(f'v_mov_b32 v{tmp}, {val}'), mk(f'buffer_atomic_add v{tmp}, v{V_SIG}, {srd(sr or S_WS)}, s53 offen sc1', grp='sig')]
class Poll:
    def __init__(self, name, sr, n, stride, count, regs, mask=None, sleep=16):
        self.name, self.sr, self.n, self.stride, self.count, self.mask, self.sleep = name, sr, n, stride, count, mask, sleep
        self.va, self.vt, self.vd = regs
    def load(self): return mk(f'buffer_load_dword v{self.vd}, v{self.va}, {srd(self.sr)}, s1 offen sc1', grp='poll')
    def issue(self):
        sh = {4: ('lshrrev', 2), 256: ('lshlrev', 4)}[self.stride]
        return [mk(f'v_lshl_add_u32 v{self.vt}, s{S_W}, 10, v{V_L16}'), mk(f'v_cmp_gt_u32 vcc, {16*self.n}, v{self.vt}'),
                mk(f'v_{sh[0]}_b32 v{self.va}, {sh[1]}, v{V_L16}'), mk(f'v_mov_b32 v{self.vd}, {OOB}'), mk(f'v_mov_b32 v{self.vt}, {self.count}'),
                mk(f'v_cndmask_b32 v{self.va}, v{self.vd}, v{self.va}, vcc'), mk(f'v_cndmask_b32 v{self.vt}, 0, v{self.vt}, vcc'), self.load()]
    def test(self):
        L = [mk(f'v_and_b32 v{self.vd}, {self.mask}, v{self.vd}')] if self.mask else []
        return L + [mk(f'v_cmp_ge_u32 vcc, v{self.vd}, v{self.vt}'), mk('s_nop 3'), mk('s_cmp_eq_u64 vcc, -1')]
    def check(self, tag=''):
        name = self.name + tag
        sp = Block('spin_' + name)
        sp.e(f'L_spin_{name}:')
        sp.e(f's_mov_b32 s0, 200000')
        sp.e(f'L_spin_{name}_l:')
        sp.e(f's_sleep {self.sleep}')
        sp.add(self.load())
        sp.e(f's_waitcnt vmcnt(0)')
        for x in self.test(): sp.add(x)
        sp.e(f's_cbranch_scc1 L_back_{name}')
        sp.e(f's_sub_u32 s0, s0, 1')
        sp.e(f's_cmp_lg_u32 s0, 0')
        sp.e(f's_cbranch_scc1 L_spin_{name}_l')
        sp.e(f's_branch L_back_{name}')
        SPINS.append(sp)
        return self.test() + [mk(f's_cbranch_scc0 L_spin_{name}'), mk(f'L_back_{name}:')]

def header(launches):
    L = [f'; @launch kernel={k} grid=(256,1,1) block=(256,1,1) lds={lds}' for k, lds in launches]
    L.append('.amdgcn_target "amdgcn-amd-amdhsa--gfx950"')
    L.append('.text')
    return '\n'.join(L) + '\n'
def kstart(k): return f'.globl {k}\n.p2align 8\n.type {k},@function\n{k}:\n'
def kdesc(k):
    return f'''.amdhsa_kernel {k}
  .amdhsa_next_free_vgpr 512
  .amdhsa_next_free_sgpr 102
  .amdhsa_accum_offset 256
  .amdhsa_group_segment_fixed_size 0
  .amdhsa_kernarg_size 96
  .amdhsa_user_sgpr_count 2
  .amdhsa_user_sgpr_kernarg_segment_ptr 1
  .amdhsa_system_sgpr_workgroup_id_x 1
  .amdhsa_float_denorm_mode_32 3
.end_amdhsa_kernel
'''

DIAG = False
STAMP_OFF = 80 << 20
RT = False
def stamp(n):
    return mk(f's_mem{"real" if RT else ""}time s[{84+2*n}:{85+2*n}]')
def stamp_entry(b):
    if DIAG: b.e('s_memrealtime s[98:99]'); b.add(stamp(0))
def stamp_exit(b, kidx):
    if not DIAG: return
    b.e('s_waitcnt vmcnt(0)')
    b.add(stamp(6))
    b.e('s_memrealtime s[100:101]')
    b.e('s_waitcnt lgkmcnt(0)')
    b.e(f's_lshl_b32 s3, s2, 2')
    b.e(f's_add_u32 s3, s3, s{S_W}')
    b.e(f's_lshl_b32 s3, s3, 6')
    b.e(f's_add_u32 s3, s3, {STAMP_OFF + kidx*65536}')
    for n in range(9):
        b.e(f'v_mov_b32 v2, s{84+2*n}')
        b.e(f'v_mov_b32 v3, 0')
        b.e(f'buffer_store_dword v2, v3, {srd(S_WS)}, s3 offen offset:{4*n}')
```

```python
import os
from common import *
from ab import Str
import attn

ACC = 128
def acc(nb, rb): return ACC + (nb*4 + rb)*4
BLK = [('a', 128 + 4*i) for i in range(32)] + [('v', 32 + 4*i) for i in range(22)] + [('a', 4*i) for i in range(18)]
NB = int(os.environ.get('DNB', '4'))
def blk(buf, i):
    f, r = BLK[buf*18 + i]; return f'{f}[{r}:{r+3}]'
def zf(buf, st, rb): return blk(buf, st*4 + rb)
def wf(buf, st, nb): return blk(buf, 8 + st*5 + nb)
VZ = 4
VW = 8
VX = 10
XR = 12
VP = (22, 23, 25)
PPRE = Poll('pre', S_WS, 8, 256, 32, VP, sleep=8)
PCTX = Poll('ctx', S_WS, 1, 256, 32, VP, sleep=8)
sDZ, sDW, sRT, sCT = 76, 77, 78, 79
ND = 23
FLAG_LDS = 159 * 1024

def setup():
    L = []; e = lambda t: L.append(mk(t))
    e(f's_and_b32 s51, s2, 7')
    e(f's_lshr_b32 s52, s2, 3')
    e(f's_lshr_b32 s{sRT}, s51, 1')
    e(f's_lshl_b32 s{sRT}, s{sRT}, 3')
    e(f's_lshr_b32 s53, s52, 2')
    e(f's_add_u32 s{sRT}, s{sRT}, s53')
    e(f's_and_b32 s{sCT}, s51, 1')
    e(f's_lshl_b32 s{sCT}, s{sCT}, 2')
    e(f's_and_b32 s53, s52, 3')
    e(f's_add_u32 s{sCT}, s{sCT}, s53')
    if os.environ.get('DMAP') == 'rows':
        e(f's_lshl_b32 s{sRT}, s51, 2'); e(f's_lshr_b32 s53, s52, 3'); e(f's_add_u32 s{sRT}, s{sRT}, s53'); e(f's_and_b32 s{sCT}, s52, 7')
    if os.environ.get('DMAP') == 'same':
        e(f's_and_b32 s{sRT}, s52, 1'); e(f's_mov_b32 s{sCT}, 0')
    if os.environ.get('DMAP') == 'c4':
        e(f's_lshr_b32 s{sRT}, s51, 2'); e(f's_lshl_b32 s{sRT}, s{sRT}, 4'); e(f's_lshr_b32 s53, s52, 1'); e(f's_add_u32 s{sRT}, s{sRT}, s53')
        e(f's_and_b32 s{sCT}, s51, 3'); e(f's_lshl_b32 s{sCT}, s{sCT}, 1'); e(f's_and_b32 s53, s52, 1'); e(f's_add_u32 s{sCT}, s{sCT}, s53')
    e(f's_mul_i32 s51, s{S_W}, 14')
    e(f's_min_u32 s51, s51, 41')
    e(f's_add_u32 s51, s51, 128')
    e(f's_mul_i32 s52, s{sRT}, {4*ZS}')
    e(f's_add_u32 s52, s52, s51')
    e(f's_lshl_b32 s52, s52, 10')
    e(f's_add_u32 s{sDZ}, s52, {Z_OFF}')
    e(f's_mul_i32 s52, s{sCT}, {ZS}')
    e(f's_add_u32 s52, s52, s51')
    e(f's_mul_i32 s52, s52, 5120')
    e(f's_add_u32 s{sDW}, s52, {WT_OFF}')
    for rb in range(4): e(f'v_add_u32 v{VZ+rb}, {rb*ZS*1024}, v{V_L16}')
    e(f'v_add_u32 v{VW}, 4096, v{V_L16}')
    e(f'v_add_u32 v{VW+1}, 8192, v{V_L16}')
    e(f's_lshl_b32 s51, s{sRT}, 2')
    e(f's_add_u32 s51, s51, s{S_W}')
    e(f's_mul_i32 s51, s51, {16*1280}')
    e(f's_mul_i32 s52, s{sCT}, 160')
    e(f's_add_u32 s51, s51, s52')
    e(f'v_bfe_u32 v{VX}, v{V_L16}, 4, 4')
    e(f'v_mul_u32_u24 v{VX}, 1280, v{VX}')
    e(f'v_add_u32 v{VX}, s51, v{VX}')
    e(f'v_lshrrev_b32 v{XR}, 8, v{V_L16}')
    e(f'v_lshl_add_u32 v{VX+1}, v{XR}, 3, v{VX}')
    e(f'v_lshl_add_u32 v{VX}, v{XR}, 4, v{VX}')
    return L

def loads(d):
    buf = d % NB
    L = []; e = lambda t: L.append(mk(t, grp='d'))
    if d == 7:
        e(f's_mul_i32 s51, s{sRT}, {4*ZS}')
        e(f's_lshl_b32 s52, s{S_W}, 5')
        e(f's_add_u32 s51, s51, s52')
        e(f's_lshl_b32 s51, s51, 10')
        e(f's_add_u32 s{sDZ}, s51, {Z_OFF}')
        e(f's_mul_i32 s51, s{sCT}, {ZS}')
        e(f's_add_u32 s51, s51, s52')
        e(f's_mul_i32 s51, s51, 5120')
        e(f's_add_u32 s{sDW}, s51, {WT_OFF}')
    elif d > 0:
        e(f's_add_u32 s{sDZ}, s{sDZ}, 2048')
        e(f's_add_u32 s{sDW}, s{sDW}, 10240')
    z2, w2 = sDZ, sDW
    if d == 6:
        e(f's_cmp_lt_u32 s{S_W}, 2')
        e(f's_cselect_b32 s51, s{sDZ}, {OOB}')
        e(f's_cselect_b32 s52, s{sDW}, {OOB}')
        z2, w2 = 51, 52
    for st in range(2):
        for rb in range(4):
            e(f'buffer_load_dwordx4 {zf(buf, st, rb)}, v{VZ+rb}, {srd(S_WS)}, s{z2 if st else sDZ} offen offset:{st*1024} {LP}')
        for nb in range(5):
            o = (st*5 + nb)*1024
            e(f'buffer_load_dwordx4 {wf(buf, st, nb)}, v{(V_L16, VW, VW+1)[o >> 12]}, {srd(S_WS)}, s{w2 if st else sDW} offen offset:{o & 4095} {LP}')
    return L

def pre_poll_issue(): return [mk(f's_mov_b32 s1, {C_PRE}')] + PPRE.issue()

DONLY = os.environ.get('DONLY')
LP = os.environ.get('DLP', 'sc1')
def gen(b, hooks):
    hk = lambda n: hooks.get(n, lambda b: None)(b)
    e = b.e
    hk('d0')
    for x in setup(): b.add(x)
    e(f'v_mov_b32 v{XR}, s{attn.sFLAG}')
    e(f's_lshl_b32 s3, s{S_W}, 2')
    e(f's_add_u32 s3, s3, {FLAG_LDS}')
    e(f'v_mov_b32 v{XR+1}, s3')
    e(f'ds_write_b32 v{XR+1}, v{XR}')
    for x in ([] if DONLY else PPRE.check()): b.add(x)
    b.waitlds()
    e('s_barrier')
    e(f'v_mov_b32 v{XR+1}, {FLAG_LDS}')
    e(f'ds_read_b128 {vr(XR+2)}, v{XR+1}')
    e(f'v_or_b32 v{XR+2}, v{XR+2}, v{XR+3}')
    e(f'v_or3_b32 v{XR+2}, v{XR+2}, v{XR+4}, v{XR+5}')
    e(f'v_readfirstlane_b32 s3, v{XR+2}')
    e(f's_andn2_b32 s3, s3, s{attn.sREDO}')
    e(f's_cmp_lg_u32 s3, 0')
    e(f's_cbranch_scc1 L_redo')
    for d in range(NB - 1):
        for x in loads(d): b.add(x)
        if d == int(os.environ.get('SIGAFTER', '1')):
            b.waitgrp('ctx')
            e('s_barrier')
            for x in signal([mk(f's_lshl_b32 s53, s{S_P}, 8'), mk(f's_add_u32 s53, s53, {C_CTX}')], XR): b.add(x)
    e(f's_lshr_b32 s1, s{sRT}, 1')
    e(f's_sub_u32 s3, 15, s1')
    e(f's_min_u32 s1, s1, s3')
    e(f's_lshl_b32 s1, s1, 8')
    e(f's_add_u32 s1, s1, {C_CTX}')
    pi = PCTX.issue()
    for x in pi[:-1]: b.add(x)
    hk('d1')
    sl = Str()
    st0 = {}
    for d in range(ND):
        st0[d] = len(sl); buf = d % NB
        for nb in range(5):
            for rb in range(4):
                for st in range(2):
                    a = vr(acc(nb, rb))
                    sl.add(f'{MF} {a}, {wf(buf, st, nb)}, {zf(buf, st, rb)}, {"0" if d == 0 and st == 0 else a}')
    for d in range(0, ND - NB + 1):
        items = loads(d + NB - 1); bind(items)
        k = st0[d]
        if d + NB - 1 == 7:
            sl.raw(k, ([] if DONLY else PCTX.check()) + [mk('s_barrier')]); k += 1
        for x in items:
            if x.kind == 'vmem': sl.put(k, x); k += int(os.environ.get('DSTEP', '2'))
            else: sl.put(k, x)
        assert k - 2 < st0[d] + 40
    sl.put(st0[7 - NB] + 1, pi[-1])
    xl = [mk(f'buffer_load_dwordx4 {vr(XR)}, v{VX}, {srd(S_X)}, 0 offen'), mk(f'buffer_load_dwordx4 {vr(XR+4)}, v{VX}, {srd(S_X)}, 0 offen offset:64'),
          mk(f'buffer_load_dwordx2 {vr(XR+8, 2)}, v{VX+1}, {srd(S_X)}, 0 offen offset:128')]
    for j, x in enumerate(xl): sl.put(st0[ND-2] + 2*j, x)
    hooks.get('dsl', lambda *a: None)(sl, st0)
    sl.emit(b)
    hk('d2')
    e(f's_mul_i32 s3, s{S_W}, 20480')
    e(f'v_add_u32 v{VZ}, s3, v{V_L16}')
    e(f's_lshl_b32 s3, s{S_W}, 10')
    e(f'v_add_u32 v{VZ+1}, s3, v{V_L16}')
    e(f'v_add_u32 v{VZ+2}, 40960, v{VZ+1}')
    for nb in range(5):
        for rb in range(4): e(f'ds_write_b128 v{VZ}, {vr(acc(nb, rb))} offset:{(nb*4 + rb)*1024}')
    b.waitlds()
    e('s_barrier')
    R = 32
    for nb in range(5):
        for w in range(4): e(f'ds_read_b128 {vr(R + (nb*4 + w)*4)}, v{VZ + 1 + (w >> 1)} offset:{(w & 1)*20480 + nb*4096}')
    T = 208
    for k in range(10):
        e(f'v_lshlrev_b32 v{T+2*k}, 16, v{XR+k}')
        e(f'v_and_b32 v{T+2*k+1}, 0xffff0000, v{XR+k}')
    for nb in range(5):
        for i in range(4):
            r = R + nb*16 + i
            e(f'v_add_f32 v{r}, v{r}, v{r+4}')
            e(f'v_add_f32 v{r+8}, v{r+8}, v{r+12}')
            e(f'v_add_f32 v{r}, v{r}, v{r+8}')
            e(f'v_add_f32 v{r}, v{r}, v{T + nb*4 + i}')
        e(f'v_cvt_pk_bf16_f32 v{XR+2*nb}, v{R+nb*16}, v{R+nb*16+1}')
        e(f'v_cvt_pk_bf16_f32 v{XR+2*nb+1}, v{R+nb*16+2}, v{R+nb*16+3}')
        if nb == 1: e(f'buffer_store_dwordx4 {vr(XR)}, v{VX}, {srd(S_OUT)}, 0 offen')
        if nb == 3: e(f'buffer_store_dwordx4 {vr(XR+4)}, v{VX}, {srd(S_OUT)}, 0 offen offset:64')
        if nb == 4: e(f'buffer_store_dwordx2 {vr(XR+8, 2)}, v{VX+1}, {srd(S_OUT)}, 0 offen offset:128')
```

```python
import sys, os, copy
sys.path.insert(0, os.path.dirname(__file__))
from common import *
import common, ab, attn, phd

KNAME = NAME + '_kernel'
QDBG_OFF = 96 << 20

def build(stop, verbose, codebytes):
    hooks = {}
    stg = eval(os.environ.get('STG', '{}'))
    if common.DIAG:
        def hc(sl, base):
            for st in range(7):
                if f'A{st}' in stg: sl.put(base[st], stamp(stg[f'A{st}']))
        def hv(sl, base, B, endB, GL):
            if 'A7' in stg: sl.put(0, stamp(stg['A7']))
            for sg in range(5):
                if f'B{sg}' in stg: sl.put(B(sg), stamp(stg[f'B{sg}']))
            if 'Kp' in stg: sl.put(B(4) - 18, stamp(stg['Kp']))
            if 'Be' in stg: sl.put(len(sl) - 1, stamp(stg['Be']))
        for n in (1, 2):
            if f'P{n}' in stg: hooks[f'p{n}'] = (lambda n: lambda b: b.add(stamp(stg[f'P{n}'])))(n)
        hooks['common'] = hc; hooks['var_diag'] = hv
        for n in range(5):
            if f'C{n}' in stg: hooks[f'at{n}'] = (lambda n: lambda b: b.add(stamp(stg[f'C{n}'])))(n)
        for n in range(3):
            if f'D{n}' in stg: hooks[f'd{n}'] = (lambda n: lambda b: b.add(stamp(stg[f'D{n}'])))(n)
        def hd(sl, st0):
            for d in range(23):
                if f'd{d}' in stg: sl.put(st0[d], stamp(stg[f'd{d}']))
        hooks['dsl'] = hd
    def var_hook(tag):
        def f(sl, base, B, endB, GL):
            if stop != 'B': attn.b4_hook(sl, base, B, endB, GL, tag)
            hooks.get('var_diag', lambda *a: None)(sl, base, B, endB, GL)
        return dict(hooks, var=f)
    b0 = Block('common')
    stamp_entry(b0)
    entry(b0, [S_WS, S_X, S_CKV, S_WUK, S_WUV, S_WQ, S_W1, S_WO, S_W2, S_OUT], 'L_end', codebytes)
    if os.environ.get('DONLY'):
        b0.waitlds()
        b0.e(f'v_mov_b32 v0, {OOB}'); b0.e(f's_mov_b32 s{attn.sFLAG}, 0'); b0.e(f's_mov_b32 s{attn.sREDO}, 0')
        phd.gen(b0, hooks); stamp_exit(b0, 0); b0.e('L_redo:'); b0.e('L_end:'); b0.e('s_endpgm')
        autowait([[b0]]); hazards([[b0]])
        return render([b0])
    img = ab.Img()
    ab.gen_common(b0, img, hooks)
    b0.e(f's_cmp_ge_u32 s{ab.S_HC}, 27')
    b0.e('s_cbranch_scc1 L_varN')
    bH = Block('varH'); ab.gen_var(bH, copy.deepcopy(img), True, 'H', var_hook('H'))
    bH.e('s_branch L_afterB')
    bN = Block('varN'); bN.e('L_varN:'); ab.gen_var(bN, copy.deepcopy(img), False, 'N', var_hook('N'))
    bj = Block('join'); bj.e('L_afterB:')
    if stop == 'D':
        def lasth(b):
            for x in phd.pre_poll_issue(): b.add(x)
        hooks['at_last'] = lasth
    mid, tails, redo = ([], [[]], None) if stop == 'B' else attn.gen(hooks)
    bz = Block('rest')
    extra = []
    if stop == 'D':
        phd.gen(bz, hooks)
        extra = [redo]
    if stop == 'B':
        bz.e(f's_lshl_b32 s3, s2, 2'); bz.e(f's_add_u32 s3, s3, s{S_W}'); bz.e('s_lshl_b32 s3, s3, 14'); bz.e(f's_add_u32 s3, s3, {QDBG_OFF}')
        for rb in range(4):
            for ds in range(4):
                bz.e(f'buffer_store_dwordx4 {vr(ab.qreg(rb, ds))}, v{V_L16}, {srd(S_WS)}, s3 offen offset:{ds*1024}')
            bz.e('s_add_u32 s3, s3, 4096')
    stamp_exit(bz, 0)
    bz.e('L_end:')
    bz.e('s_endpgm')
    paths = [[b0, bH, bj] + t + [bz] for t in tails] + [[b0, bN, bj] + tails[0] + [bz]]
    if extra: paths.append([redo, redo] + tails[1] + [bz])
    check_binds(paths)
    autowait(paths)
    check_lds(paths)
    hazards(paths, verbose=verbose)
    return render([b0, bH, bN, bj] + mid + [bz] + extra + SPINS)

def main(out, stop, verbose=False):
    body = build(stop, verbose, int(os.environ.get('CODEBYTES', '40000')))
    txt = f'; @launch grid=(256,1,1) block=(256,1,1) lds=163840\n.amdgcn_target "amdgcn-amd-amdhsa--gfx950"\n.text\n'
    txt += kstart(KNAME) + body + '.section .rodata,"a"\n.p2align 6\n' + kdesc(KNAME)
    open(out, 'w').write(txt)

if __name__ == '__main__':
    common.DIAG = 'diag' in sys.argv; common.RT = 'rt' in sys.argv
    main(sys.argv[1], sys.argv[2], verbose='-v' in sys.argv)
```

```python
import os
from common import *

VA_CK = 2; VA_W = 6; VA_T = 10; VA_P = 18; VA_ST = 24
WF = 32; PK = 64; ACCA = 128; ACCB = 64
LNA = 64; LNR = 72; LNX = 84; LNT = 108
STG = (2, 18)
VB_HD = 25
VB_HT = (22, 23, 29, 30)
SC1 = 'sc1'
W_REG = [0, 1, 0, 1, 3, 0, 2, 1]
P_REG = [1, 2, 3, 4, 2, 3, 4, 2]
BQ = [96*1024, 64*1024, 32*1024, 96*1024, 64*1024]
BH = [0, 16*1024, 128*1024, 0, 144*1024]
LN_LDS = 148 * 1024
S_HC = 66
QSCALE = 0.12751743082459868

def acca(cb, rb): return ACCA + (cb * 4 + rb) * 4
def accb(cb, rb): return ACCB + (cb * 4 + rb) * 4
def qreg(rb, ds): return accb(4 + 2*ds, rb)
def ck(rb, s): return (s * 4 + rb) * 4

def setup(b):
    e = b.e
    e('v_and_b32 v32, 15, v0')
    e('v_lshrrev_b32 v33, 4, v0')
    e('v_bfe_u32 v34, v0, 2, 2')
    e('v_and_b32 v35, 3, v0')
    e(f's_lshl_b32 s{S_T}, s{S_P}, 8')
    e(f's_lshl_b32 s{S_T+1}, s{S_W}, 6')
    e(f's_add_u32 s{S_T}, s{S_T}, s{S_T+1}')
    e('v_lshrrev_b32 v36, 3, v0')
    e(f'v_add_u32 v36, s{S_T}, v36')
    e(f'v_lshlrev_b32 v36, 10, v36')
    e('v_and_b32 v37, 7, v0')
    e('v_xor_b32 v37, v37, v33')
    e(f'v_lshl_add_u32 v{VA_CK}, v37, 4, v36')
    e(f'v_xor_b32 v{VA_CK+1}, 64, v{VA_CK}')
    e(f'v_add_u32 v{VA_CK+2}, {2*7168}, v{VA_CK}')
    e(f'v_add_u32 v{VA_CK+3}, {3*7168}, v{VA_CK+1}')
    e(f'v_add_u32 v{VA_CK+1}, {1*7168}, v{VA_CK+1}')
    V = VA_W
    e('v_bfe_u32 v36, v0, 1, 3')
    e('v_xor_b32 v36, v36, v33')
    e('v_lshlrev_b32 v37, 13, v33')
    e('v_lshl_add_u32 v37, v36, 5, v37')
    e('v_and_b32 v38, 1, v0')
    e('v_lshl_add_u32 v37, v38, 4, v37')
    e(f's_lshl_b32 s{S_T}, s{S_H}, 8')
    e(f's_lshl_b32 s{S_T+1}, s{S_W}, 17')
    e(f's_add_u32 s{S_T}, s{S_T}, s{S_T+1}')
    e(f'v_add_u32 v{V}, s{S_T}, v37')
    e(f'v_xor_b32 v{V+2}, 128, v{V}')
    e(f'v_add_u32 v{V+1}, {4*8192 - 1024}, v{V}')
    e(f'v_add_u32 v{V+3}, {3*(4*8192 - 1024)}, v{V+2}')
    e(f'v_add_u32 v{V+2}, {2*(4*8192 - 1024)}, v{V+2}')

def setup_x(b):
    e = b.e
    e(f's_lshl_b32 s{S_T}, s{S_H}, 3')
    e(f's_sub_u32 s{S_T+1}, 14, s{S_P}')
    e(f's_cmp_lt_u32 s{S_T}, 128')
    e(f's_cselect_b32 s{S_T+1}, s{S_P}, s{S_T+1}')
    e(f's_lshl_b32 s{S_T+1}, s{S_T+1}, 7')
    e(f's_add_u32 s1, s{S_T}, s{S_T+1}')
    e(f's_lshl_b32 s{S_T+1}, s{S_W}, 1')
    e(f's_add_u32 s{S_T}, s1, s{S_T+1}')
    e('v_lshrrev_b32 v36, 5, v0')
    e(f'v_add_u32 v36, s{S_T}, v36')
    e('v_and_b32 v37, 31, v0')
    e('v_mul_u32_u24 v38, 1280, v36')
    e(f'v_lshl_add_u32 v{LNA}, v37, 4, v38')
    e(f'v_mov_b32 v39, {OOB}')
    e(f'v_add_u32 v38, 1024, v{LNA}')
    e('v_cmp_gt_u32 s[62:63], 16, v37')
    e('s_nop 1')
    e(f'v_cndmask_b32 v{LNA+1}, v39, v38, s[62:63]')

def setup_late(b):
    e = b.e
    e('v_lshrrev_b32 v36, 1, v32')
    e('v_xor_b32 v36, v36, v33')
    e('v_lshlrev_b32 v36, 4, v36')
    e('v_lshl_add_u32 v36, v32, 7, v36')
    e(f'v_add_u32 v{VA_P}, s{S_W8K}, v36')
    e(f'v_xor_b32 v{VA_P+1}, 64, v{VA_P}')
    for k in (1, 2):
        e(f'v_add_u32 v{VA_P+2*k}, {k*0x10000}, v{VA_P}')
        e(f'v_add_u32 v{VA_P+2*k+1}, {k*0x10000}, v{VA_P+1}')
    e('v_lshl_add_u32 v38, v33, 3, v34')
    e('v_lshlrev_b32 v38, 8, v38')
    e('v_lshl_add_u32 v38, v35, 3, v38')
    e('v_and_b32 v36, 1, v33')
    e('v_lshl_add_u32 v36, v36, 2, v34')
    e(f'v_lshl_add_u32 v{VA_T}, v36, 5, v38')
    for cb in range(1, 8): e(f'v_xor_b32 v{VA_T+cb}, {32*cb}, v{VA_T}')
    e('v_and_b32 v37, 31, v0')
    e('v_lshrrev_b32 v36, 5, v0')
    e(f's_lshl_b32 s{S_T}, s{S_W}, 5')
    e(f's_add_u32 s{S_T}, s{S_T}, {LN_LDS}')
    e(f'v_lshl_add_u32 v36, v36, 4, s{S_T}')
    e(f'v_lshl_add_u32 v{LNA+2}, v37, 7, v36')
    e(f's_lshl_b32 s{S_T}, s{S_W}, 10')
    e(f's_add_u32 s{S_T}, s{S_T}, {LN_LDS}')
    e(f'v_add_u32 v{LNA+3}, s{S_T}, v{V_L16}')
    e('v_lshrrev_b32 v36, 5, v0')
    e('v_bfe_u32 v37, v0, 3, 2')
    e('v_and_b32 v38, 7, v0')
    e('v_lshlrev_b32 v36, 10, v36')
    e('v_lshl_add_u32 v36, v37, 8, v36')
    e('v_lshl_add_u32 v36, v38, 4, v36')
    e(f's_lshr_b32 s{S_T}, s1, 4')
    e(f's_mul_i32 s{S_T}, s{S_T}, 20480')
    e(f's_and_b32 s{S_T+1}, s1, 8')
    e(f's_lshl_b32 s{S_T+1}, s{S_T+1}, 4')
    e(f's_add_u32 s{S_T}, s{S_T}, s{S_T+1}')
    e(f's_lshl_b32 s{S_T+1}, s{S_W}, 11')
    e(f's_add_u32 s{S_T}, s{S_T}, s{S_T+1}')
    e(f'v_add_u32 v{LNA+4}, s{S_T}, v36')
    e(f's_lshl_b32 s{S_T}, s{S_H}, 20')
    e(f's_lshl_b32 s{S_T+1}, s{S_P}, 2')
    e(f's_add_u32 s{S_T+1}, s{S_T+1}, s{S_W}')
    e(f's_lshl_b32 s{S_T+1}, s{S_T+1}, 14')
    e(f's_add_u32 s{S_T}, s{S_T}, s{S_T+1}')
    e(f's_add_u32 s{S_T}, s{S_T}, {KV_OFF}')
    e(f'v_add_u32 v{VA_ST}, s{S_T}, v{V_L16}')
    e(f's_lshl_b32 s51, s{S_P}, 2')
    e(f's_add_u32 s51, s51, s{S_W}')
    e(f's_lshl_b32 s51, s51, 1')
    e(f's_sub_u32 s52, 126, s51')
    e(f's_mul_i32 s{S_SX}, s51, 20480')
    e(f's_mul_i32 s{S_SX+2}, s52, 20480')
    e(f's_mul_i32 s{S_SZ}, s51, {ZS*1024}')
    e(f's_mul_i32 s{S_SZ+2}, s52, {ZS*1024}')
    e(f's_add_u32 s{S_SZ}, s{S_SZ}, {Z_OFF}')
    e(f's_add_u32 s{S_SZ+2}, s{S_SZ+2}, {Z_OFF}')
    for k in (0, 2):
        e(f's_add_u32 s{S_SX+k+1}, s{S_SX+k}, {20480}')
        e(f's_add_u32 s{S_SZ+k+1}, s{S_SZ+k}, {ZS*1024}')
    e(f'v_lshl_or_b32 v36, s{S_W}, 6, v0')
    e(f'v_cmp_eq_u32 vcc, 0, v36')
    e(f'v_mov_b32 v37, 0')
    e(f'v_mov_b32 v39, {OOB}')
    e(f'v_cndmask_b32 v{V_SIG}, v39, v37, vcc')

def xcc_val():
    return [mk('s_getreg_b32 s51, hwreg(HW_REG_XCC_ID, 0, 4)'), mk('s_mul_i32 s52, s51, s51'), mk('s_lshl_b32 s52, s52, 10'),
            mk('s_lshl_b32 s51, s51, 4'), mk('s_add_u32 s51, s51, s52'), mk('s_add_u32 s51, s51, 1')]
def kv_off(r): return [mk(f's_lshl_b32 s{r}, s{S_H}, 8'), mk(f's_add_u32 s{r}, s{r}, {C_KV}')]
S_PLC = 62

GA = 120
def warm_setup(b):
    e = b.e
    e('s_lshr_b32 s51, s2, 3')
    e(f's_lshl_b32 s51, s51, 2')
    e(f's_add_u32 s51, s51, s{S_W}')
    e('s_and_b32 s52, s2, 7')
    e('v_lshrrev_b32 v36, 3, v0')
    e('v_and_b32 v37, 7, v0')
    e('v_lshlrev_b32 v37, 7, v37')
    e('v_lshl_add_u32 v38, v36, 13, v37')
    e('s_lshl_b32 s53, s52, 10')
    e('v_add_u32 v38, s53, v38')
    e('s_and_b32 s3, s51, 63')
    e('s_lshl_b32 s3, s3, 16')
    e('s_add_u32 s53, s3, 0x100000')
    e('s_cmp_lt_u32 s51, 64')
    e(f's_cselect_b32 s3, s3, {OOB}')
    e(f's_cselect_b32 s53, {OOB}, s53')
    e(f'v_add_u32 v{GA}, s3, v38')
    e(f'v_add_u32 v{GA+4}, s53, v38')
    e('s_lshl_b32 s3, s51, 16')
    e(f'v_add_u32 v{GA+1}, s3, v38')
    e('v_lshl_add_u32 v38, v36, 10, v37')
    e('s_lshl_b32 s3, s52, 18')
    e('s_lshl_b32 s53, s51, 13')
    e('s_add_u32 s3, s3, s53')
    e('s_cmp_lt_u32 s51, 32')
    e(f's_cselect_b32 s3, s3, {OOB}')
    e(f'v_add_u32 v{GA+2}, s3, v38')
    e('v_lshrrev_b32 v36, 2, v0')
    e('v_and_b32 v37, 3, v0')
    e('v_mul_u32_u24 v36, 3456, v36')
    e('v_lshl_add_u32 v36, v37, 7, v36')
    e('s_min_u32 s3, s52, 5')
    e('s_lshl_b32 s52, s52, 2')
    e('s_sub_u32 s52, s52, s3')
    e('s_lshl_b32 s52, s52, 7')
    e('s_sub_u32 s3, s51, 80')
    e(f's_mul_i32 s53, s3, {16*3456}')
    e('s_add_u32 s52, s52, s53')
    e('s_cmp_lt_u32 s3, 40')
    e(f's_cselect_b32 s52, s52, {OOB}')
    e(f'v_add_u32 v{GA+3}, s52, v36')
def warm(n):
    sr = srd((S_WUV, S_WQ, S_CKV, S_W1, S_WUK)[n])
    return mk(f'buffer_load_dword v{ {1: 3, 3: 4}.get(n, GA+n) }, v{GA+n}, {sr}, 0 offen')

def ln_loads():
    return [mk(f'buffer_load_dwordx4 {vr(LNR)}, v{LNA}, {srd(S_X)}, 0 offen'),
            mk(f'buffer_load_dwordx4 {vr(LNR+4)}, v{LNA}, {srd(S_X)}, 0 offen offset:512'),
            mk(f'buffer_load_dwordx4 {vr(LNR+8)}, v{LNA+1}, {srd(S_X)}, 0 offen')]

def ln_compute():
    b = Block('ln'); e = b.e
    X = LNX; T = LNT
    def red32(v, t):
        for r in (8, 4, 2, 1):
            e(f'v_add_f32_dpp v{v}, v{v}, v{v} row_ror:{r} row_mask:0xf bank_mask:0xf')
        e(f'v_mov_b32 v{t}, v{v}')
        e(f'v_permlane16_swap_b32 v{v}, v{t}')
        e(f'v_add_f32 v{v}, v{v}, v{t}')
    for k in range(12):
        e(f'v_lshlrev_b32 v{X+2*k}, 16, v{LNR+k}')
        e(f'v_and_b32 v{X+2*k+1}, 0xffff0000, v{LNR+k}')
    e(f'v_add_f32 v{T}, v{X}, v{X+1}')
    e(f'v_add_f32 v{T+1}, v{X+2}, v{X+3}')
    for k in range(4, 24): e(f'v_add_f32 v{T+(k&1)}, v{T+(k&1)}, v{X+k}')
    e(f'v_add_f32 v{T}, v{T}, v{T+1}')
    red32(T, T+1)
    e(f'v_mul_f32 v{T}, {1.0/640!r}, v{T}')
    for k in range(16, 24): e(f'v_cndmask_b32 v{X+k}, v{T}, v{X+k}, s[62:63]')
    e(f'v_sub_f32 v{T+2}, v{X}, v{T}')
    e(f'v_mul_f32 v{T+1}, v{T+2}, v{T+2}')
    for k in range(1, 24):
        e(f'v_sub_f32 v{T+2+(k&1)}, v{X+k}, v{T}')
        e(f'v_fmac_f32 v{T+1}, v{T+2+(k&1)}, v{T+2+(k&1)}')
    red32(T+1, T+2)
    e(f'v_mul_f32 v{T+1}, {1.0/640!r}, v{T+1}')
    e(f'v_cvt_pk_bf16_f32 v{T}, v{T}, v{T+1}')
    e(f'v_and_b32 v{T+1}, 0xffff0000, v{T}')
    e(f'v_lshlrev_b32 v{T}, 16, v{T}')
    e(f'v_add_f32 v{T+1}, 0x3727c5ac, v{T+1}')
    e(f'v_cvt_pk_bf16_f32 v{T+1}, v{T+1}, v{T+1}')
    e(f'v_lshlrev_b32 v{T+1}, 16, v{T+1}')
    e(f'v_sqrt_f32 v{T+1}, v{T+1}')
    e(f'v_cvt_pk_bf16_f32 v{T+1}, v{T+1}, v{T+1}')
    e(f'v_lshlrev_b32 v{T+1}, 16, v{T+1}')
    e(f'v_rcp_f32 v{T+1}, v{T+1}')
    for k in range(12):
        a = X + 2*k
        e(f'v_sub_f32 v{a}, v{a}, v{T}')
        e(f'v_sub_f32 v{a+1}, v{a+1}, v{T}')
        e(f'v_cvt_pk_bf16_f32 v{a}, v{a}, v{a+1}')
        e(f'v_and_b32 v{a+1}, 0xffff0000, v{a}')
        e(f'v_lshlrev_b32 v{a}, 16, v{a}')
        e(f'v_mul_f32 v{a}, v{a}, v{T+1}')
        e(f'v_mul_f32 v{a+1}, v{a+1}, v{T+1}')
        e(f'v_cvt_pk_bf16_f32 v{LNR+k}, v{a}, v{a+1}')
    return b.ins
def ln_writes():
    return [mk(f'ds_write_b128 v{LNA+2}, {vr(LNR+4*j)} offset:{j*4096}', obj=ldsobj('LN', LN_LDS, 12288)) for j in range(3)]
def ln_reads(): return [mk(f'ds_read_b128 {vr(LNR+4*n)}, v{LNA+3} offset:{n*4096}', obj='LN') for n in range(3)]
def ln_stores():
    L = []
    for n in range(3):
        L.append(mk(f's_mov_b32 s55, {XN_OFF + n*8192}'))
        if n == 2: L += [mk(f's_cmp_lt_u32 s{S_W}, 2'), mk(f's_cselect_b32 s55, s55, {OOB}')]
        L.append(mk(f'buffer_store_dwordx4 {vr(LNR+4*n)}, v{LNA+4}, {srd(S_WS)}, s55 offen {SC1}', grp='xn'))
    return L

def wide_dma(sr, row0, lds, grp, obj):
    L = []; ldsobj(obj, lds, 32768)
    for hf in range(2):
        L.append(mk(f's_mov_b32 s54, {(row0 + hf*64)*8192}'))
        L.append(mk(f's_add_u32 m0, s{S_W4K}, {lds + hf*16384}'))
        for n in range(4):
            L.append(mk(f'buffer_load_dwordx4 v{VA_W+n}, {srd(sr)}, s54 offen offset:{n*1024} lds', grp=grp, obj=obj))
    return L
def w_dma(st): return wide_dma(S_WUK if st < 4 else S_WUV, (st & 3) * 128, W_REG[st] * 32768, f'w{st}', f'W{st}')
def p_dma(q):
    L = []
    for hf in range(2):
        L.append(mk(f's_mov_b32 s54, {hf*32768 + q*128}'))
        L.append(mk(f's_add_u32 m0, s{S_W8K}, {P_REG[q]*32768 + hf*4096}'))
        for n in range(4):
            L.append(mk(f'buffer_load_dwordx4 v{VA_CK+n}, {srd(S_CKV)}, s54 offen offset:{n*1024} lds', grp=f'p{q}', obj=ldsobj(f'P{q}', P_REG[q]*32768, 32768, 8192)))
    return L
def p_regs(q): return [f'a{ck(rb, 2*q+s2)+i}' for rb in range(4) for s2 in range(2) for i in range(4)]
def p_reads(q):
    R = P_REG[q]
    return [waitgrp(f'p{q}')] + [mk(f'ds_read_b128 {ar(ck(rb, 2*q+s2))}, v{VA_P + 2*(R>>1) + s2} offset:{(R&1)*32768 + rb*2048}', obj=f'P{q}')
            for s2 in range(2) for rb in range(4)]
class Img:
    def __init__(self): self.base = {}
    def reads(self, areg, base, nxt, buf, sstride, obj):
        cur = self.base.get(areg, 0)
        rel = base - cur
        assert 0 <= rel and rel + 3*sstride + 1024 < 65536, (areg, base, cur)
        L = []
        for s4 in range(4):
            for j2 in range(2):
                L.append(mk(f'ds_read_b64_tr_b16 {vr(WF + buf*16 + s4*4 + j2*2, 2)}, v{areg} offset:{rel + s4*sstride + j2*1024}', obj=obj))
        if nxt is not None and not (0 <= nxt - cur and nxt - cur + 3*sstride + 1024 < 65536):
            L.append(mk(f'v_add_u32 v{areg}, {hex((nxt - cur) & 0xffffffff)}, v{areg}'))
            self.base[areg] = nxt
        return L

def cvt4(t, d0, d1):
    return [mk(f'v_cvt_pk_bf16_f32 v{t}, v{d0}, v{d0+1}'), mk(f'v_cvt_pk_bf16_f32 v{t+1}, v{d0+2}, v{d0+3}'),
            mk(f'v_cvt_pk_bf16_f32 v{t+2}, v{d1}, v{d1+1}'), mk(f'v_cvt_pk_bf16_f32 v{t+3}, v{d1+2}, v{d1+3}')]
KVSC = os.environ.get('KVSC', '')
def kv_store(t, off):
    if KVSC == 'none': return [mk(f's_mov_b32 s55, {off}')]
    return [mk(f's_mov_b32 s55, {off}'), mk(f'buffer_store_dwordx4 {vr(t)}, v{VA_ST}, {srd(S_WS)}, s55 offen {KVSC}', grp='kv')]

class Str(Slots):
    def ch(self, items, k, minstep=0, before=None):
        k, left = self.chain(items, k, minstep); assert not left, (len(left), left[0].text)
        assert before is None or k < before, (k, before)
        return k
    def dma(self, items, k, step=4):
        return self.ch(items, max(k - 1, 0), step) + step
    def paced(self, items, t, period):
        bind(items); pend = []
        for it in items:
            if it.kind != 'vmem': pend.append(it); continue
            k = max(int(t), self.lastp + 1 + len([x for x in pend if x.kind != 'pseudo']))
            while not self.fits(k, it): k += 1
            kk = self.lastp + 1
            if k - kk > len(pend) + 2: kk = k - len(pend) - 2
            for x in pend:
                kk = self.place(x, kk)
            if pend and (kk > k or (kk == k and 'm0' in pend[-1].wr)):
                k = kk + 1
                while not self.fits(k, it): k += 1
            self.put(k, it); self.lastp = k; pend = []
            t = max(t + period, k + period - 2)
        assert not pend
        return t
    lastp = -1
    def reads(self, items, k0, after_barrier):
        pos = (1, 2, 3, 4, 6, 8, 10, 12, 13) if after_barrier or k0 < 3 else (-3, -1, 1, 3, 5, 7, 9, 11, 12)
        for j, x in enumerate(items): self.put(k0 + pos[j], x)

def a_group(sl, st, cb, buf):
    for rb in range(4):
        for s4 in range(4):
            s = (st & 3) * 4 + s4
            d = vr(acca(cb, rb)); w = vr(WF + buf*16 + s4*4); a = ar(ck(rb, s))
            cin = '0' if s == 0 else d
            if st < 4: sl.add(f'{MF} {d}, {w}, {a}, {cin}')
            else: sl.add(f'{MF} {d}, {a}, {w}, {cin}')
def barrier_at(sl, k, grps):
    for g in grps: sl.put(k, waitgrp(g))
    sl.put(k, waitlds())
    sl.put(k, mk('s_barrier'))

def gen_common(b, img, hooks):
    e = b.e
    setup(b)
    b.waitlds()
    late = Block('late'); setup_x(late); warm_setup(late); setup_late(late)
    lq = list(late.ins)
    burst = p_dma(0) + w_dma(0) + p_dma(1) + p_dma(2)
    bind(burst)
    for x in burst:
        b.add(x)
        if x.kind == 'vmem':
            n = 0
            while lq and (n < 9 or any(r in ('scc', 'vcc') for r in lq[0].rd)):
                b.add(lq.pop(0)); n += 1
    for x in lq: b.add(x)
    WM = os.environ.get('WARM', '2||0|13') + '||||'
    for c in WM.split('|')[0]: b.add(warm(int(c)))
    hooks.get('p2', lambda b: None)(b)
    for x in p_reads(0) + p_reads(1): b.add(x)
    b.waitgrp('w0')
    b.waitlds()
    e('s_barrier')
    wreg = lambda st: W_REG[st] * 32768 if st < 8 else BQ[0]
    for x in img.reads(VA_T, wreg(0), wreg(1), 0, 8192, 'W0'): b.add(x)
    sl = Str(); base = {}; n = 0
    for st in range(7):
        base[st] = len(sl)
        for cb in range(8):
            buf = n & 1; k0 = len(sl)
            a_group(sl, st, cb, buf)
            nst, ncb = (st, cb + 1) if cb < 7 else (st + 1, 0)
            if ncb == 0: barrier_at(sl, k0, [f'w{nst}'] + (['xn'] if st == 3 else []))
            sl.reads(img.reads(VA_T + ncb, wreg(nst), wreg(nst + 1), buf ^ 1, 8192, f'W{nst}'), k0, ncb == 0)
            n += 1
    base[7] = len(sl)
    end = lambda st: base[st] + 7*16 + 3
    kw = sl.ch(ln_writes(), end(2) + 9, before=base[3] + 4)
    sl.put(base[3] + 10, waitlds()); sl.put(base[3] + 10, mk('s_barrier'))
    kk = sl.ch(ln_reads(), base[3] + 10)
    k = sl.dma(w_dma(1) + p_dma(3) + ln_loads() + p_dma(4), 2)
    k = sl.dma([waitreg(p_regs(2))] + p_dma(5) + [warm(int(c)) for c in WM.split('|')[1]], k)
    k = sl.dma(w_dma(2), max(k, end(0)))
    k = sl.dma([waitreg(p_regs(3))] + p_dma(6), k)
    k = sl.dma([waitreg(p_regs(4))] + p_dma(7) + [warm(int(c)) for c in WM.split('|')[2]], k)
    for q, k0, dl in ((2, base[0] + 40, None), (3, base[0] + 94, base[1]), (4, base[1] + 40, None), (5, base[1] + 76, base[1] + 112),
                      (6, base[2] + 44, None), (7, base[2] + 78, base[2] + 112)):
        if q == 6: k = sl.dma(w_dma(3) + w_dma(4), max(k, end(1)), 4)
        sl.ch(p_reads(q), k0, before=dl)
    k = kw6 = sl.dma(w_dma(5) + w_dma(6) + [warm(int(c)) for c in WM.split('|')[3]], max(k, end(2)), 5)
    kd = sl.dma(w_dma(7), max(k, end(3)), 5)
    sl.ch([mk('s_lshl_b32 s53, s2, 8'), mk(f's_add_u32 s53, s53, {CNT_OFF}'), mk(f's_cmp_lt_u32 s2, {N_CNT}'), mk(f's_cselect_b32 s53, s53, {OOB}'),
           mk(f'v_mov_b32 v{LNT}, 0'), mk(f'buffer_store_dword v{LNT}, v{V_SIG}, {srd(S_WS)}, s53 offen sc1', grp='xn')], 40)
    kk = sl.ch(ln_stores(), kk + 6, 2, before=base[3] + 48)
    sl.ch(ln_compute(), base[1] + 16, before=end(2) + 9)
    sl.ch(xcc_val() + signal([mk(f's_lshl_b32 s53, s{S_H}, 2')], STG[0], 's51', S_DBG), max(end(3), kw6 + 1))
    k = kk + 2; kst = base[3] + 2*16 + 12; stores = []
    for pair in range(4):
        for rb in range(4):
            f = pair*4 + rb
            k = sl.ch([mk(f'v_mul_f32 v{r+i}, {QSCALE!r}, v{r+i}') for r in (acca(2*pair, rb), acca(2*pair+1, rb)) for i in range(4)] + cvt4(PK + f*4, acca(2*pair, rb), acca(2*pair+1, rb)), max(k, base[3] + (2*pair + 2)*16 + 4), before=base[4] + 2*pair*16)
            kst = sl.ch(kv_store(PK + f*4, (rb*4 + pair)*1024), max(kst, k + 1)) + 21
            stores.append(kst)
    assert kst - 21 < base[7], (kst, base)
    k = sl.dma(q_dma(0), max(end(4), kd), 5)
    sl.raw(base[5] - 1, hc_setup())
    sl.ch(b_setup_dma() + b_setup_tr(), base[5], before=end(5))
    px = Poll('xn', S_DBG, 32, 4, 8, (STG[1], STG[1] + 1, STG[1] + 2), mask=15)
    sl.ch([mk('s_mov_b32 s1, 0')] + px.issue(), base[6] + 2*16 + 8)
    sl.raw(base[6] + 7*16 - 1, px.check())
    sl.ch([mk(f's_lshl_b32 s1, s{S_H}, 2'), mk(f'buffer_load_dword v{STG[0]}, v{V_SIG}, {srd(S_DBG)}, s1 offen sc1')], end(6))
    k = sl.dma(h_dma(0) + h_dma(1), max(k + 2, end(5) + 2), 5)
    k = sl.dma(x_loads(0, 0)[:3], max(k, end(6)), 4)
    if 'common' in hooks: hooks['common'](sl, base)
    sl.emit(b)

def hc_setup():
    b = Block('hc'); e = b.e
    e(f's_add_u32 s51, s{S_H}, 1')
    e(f's_lshr_b32 s52, s51, 2')
    e(f's_min_u32 s52, s52, 5')
    e(f's_sub_u32 s{S_HC}, s{S_H}, s52')
    e(f's_and_b32 s51, s51, 3')
    e(f's_cmp_lt_u32 s{S_H}, 20')
    e(f's_cselect_b32 s51, s51, 1')
    e(f's_cmp_eq_u32 s51, 0')
    e(f's_cselect_b32 s{S_HC}, 0x10000, s{S_HC}')
    return b.ins
def b_setup_dma():
    L = []; e = lambda t: L.append(mk(t))
    V = VB_HD
    e(f'v_bfe_u32 v29, v{V_L16}, 7, 2')
    e(f'v_lshrrev_b32 v22, 9, v{V_L16}')
    e(f'v_lshl_add_u32 v29, v22, 3, v29')
    e(f'v_mul_u32_u24 v29, 3456, v29')
    e(f'v_bfe_u32 v22, v{V_L16}, 5, 2')
    e(f'v_lshrrev_b32 v23, 8, v{V_L16}')
    e(f'v_xor_b32 v22, v22, v23')
    e(f'v_lshl_add_u32 v29, v22, 5, v29')
    e(f'v_and_b32 v22, 16, v{V_L16}')
    e(f'v_add_u32 v29, v29, v22')
    e(f's_mul_i32 s51, s{S_W}, {32*3456}')
    e(f's_lshl_b32 s52, s{S_HC}, 7')
    e(f's_add_u32 s51, s51, s52')
    e(f'v_add_u32 v{V}, s51, v29')
    for n in range(1, 4): e(f'v_add_u32 v{V+n}, {(4*(n&1) + 16*(n>>1))*3456 - n*1024}, v{V}')
    return L
def b_setup_tr():
    L = []; e = lambda t: L.append(mk(t))
    T = VB_HT
    e(f'v_bfe_u32 v31, v{V_L16}, 6, 2')
    e(f'v_bfe_u32 v{T[2]}, v{V_L16}, 8, 1')
    e(f'v_lshrrev_b32 v{T[3]}, 9, v{V_L16}')
    e(f'v_lshl_add_u32 v{T[0]}, v{T[2]}, 2, v31')
    e(f'v_lshl_add_u32 v{T[0]}, v{T[3]}, 4, v{T[0]}')
    e(f'v_lshlrev_b32 v{T[0]}, 7, v{T[0]}')
    e(f'v_bfe_u32 v{T[3]}, v{V_L16}, 4, 2')
    e(f'v_lshl_add_u32 v{T[0]}, v{T[3]}, 3, v{T[0]}')
    e(f'v_lshrrev_b32 v31, 1, v31')
    e(f'v_lshl_add_u32 v31, v{T[2]}, 1, v31')
    e(f'v_lshl_add_u32 v{T[0]}, v31, 5, v{T[0]}')
    e(f'v_add_u32 v{T[0]}, {BH[0]}, v{T[0]}')
    for cb in range(1, 4): e(f'v_xor_b32 v{T[cb]}, {32*cb}, v{T[0]}')
    return L

def q_dma(sg): return wide_dma(S_WQ, sg * 128, BQ[sg], f'b{sg}', f'Q{sg}')
def h_dma(sg):
    L = [mk(f's_mov_b32 s54, {sg*128*3456}'), mk(f's_add_u32 m0, s{S_W4K}, {BH[sg]}')]
    for n in range(4):
        L.append(mk(f'buffer_load_dwordx4 v{VB_HD+n}, {srd(S_W1)}, s54 offen offset:{n*1024} lds', grp=f'b{sg}', obj=ldsobj(f'H{sg}', BH[sg], 16384)))
    return L
def xreg(sg, rb, s4): return (sg & 1) * 64 + (rb * 4 + s4) * 4
def x_loads(sg, rb):
    L = [mk(f's_add_u32 s54, s{S_SX+rb}, {XN_OFF + sg*4096}')]
    for s4 in range(4):
        L.append(mk(f'buffer_load_dwordx4 {ar(xreg(sg, rb, s4))}, v{V_L16}, {srd(S_WS)}, s54 offen offset:{s4*1024} sc1', grp='x'))
    return L

def silu_ops(d, t):
    return [mk(f'v_mul_f32 v{t}, 0xbfb8aa3b, v{d}'), mk(f'v_exp_f32 v{t}, v{t}'), mk(f'v_add_f32 v{t}, 1.0, v{t}'),
            mk(f'v_rcp_f32 v{t}, v{t}'), mk(f'v_mul_f32 v{d}, v{d}, v{t}')]

def gen_var(b, img, withH, tag, hooks):
    for cb in range(4): img.base[VB_HT[cb]] = BH[0]
    sl = Str(); base = {}
    n = 56
    cbs = list(range(12)) if withH else list(range(4, 12))
    seq = [('A', 7, cb) for cb in range(8)] + [('B', sg, cb) for sg in range(5) for cb in cbs]
    def reads(ph, st, cb, buf):
        if ph == 'A': return img.reads(VA_T + cb, W_REG[7]*32768, BQ[0], buf, 8192, 'W7')
        if cb >= 4: return img.reads(VA_T + cb - 4, BQ[st], BQ[st+1] if st < 4 else None, buf, 8192, f'Q{st}')
        return img.reads(VB_HT[cb], BH[st], BH[st+1] if st < 4 else None, buf, 4096, f'H{st}')
    gstart = {}
    for i, (ph, st, cb) in enumerate(seq):
        buf = n & 1; k0 = len(sl)
        gstart[(ph, st, cb)] = k0
        base.setdefault((ph, st), k0)
        if ph == 'A': a_group(sl, st, cb, buf)
        else:
            for rb in range(4):
                for s4 in range(4):
                    d = vr(accb(cb, rb))
                    sl.add(f'{MF} {d}, {vr(WF + buf*16 + s4*4)}, {ar(xreg(st, rb, s4))}, {"0" if st == 0 and s4 == 0 else d}')
        if i + 1 < len(seq):
            nph, nst, ncb = seq[i + 1]
            if (nph, nst) != (ph, st):
                barrier_at(sl, k0, [f'b{nst}'] + (['kv'] if (ph, st) == ('B', 1) else []))
            sl.reads(reads(nph, nst, ncb, buf ^ 1), k0, (nph, nst) != (ph, st))
        n += 1
    GL = len(cbs) * 16
    A7 = base[('A', 7)]; B = lambda sg: base[('B', sg)]
    endB = lambda sg: B(sg) + GL - 16 + 3
    xl = x_loads(0, 0)
    k = sl.dma([xl[0]] + xl[3:] + [x for rb in range(1, 4) for x in x_loads(0, rb)] + q_dma(1), A7 + 1, 4)
    k = sl.dma([x for rb in range(4) for x in x_loads(1, rb)], k, 5)
    sl.ch([mk(f'v_readfirstlane_b32 s3, v{STG[0]}')] + xcc_val() + [mk('s_lshl_b32 s51, s51, 3'), mk(f's_cmp_eq_u32 s{S_W}, 0'), mk('s_cselect_b32 s3, s3, s51'),
           mk(f's_sub_u32 s{S_PLC}, s3, s51')], A7 + 20, before=A7 + 36)
    span = (gstart[('B', 0, 10)] - (A7 + 36)) // 16
    kst = A7 + 36
    for pair in range(4):
        for f in range(4):
            cb, kg = 2*pair + (f & 1), f >> 1
            t = STG[f & 1]
            kst = max(kst, A7 + (2*pair + 2)*16 + 4)
            dl = gstart[('B', 0, 4 + 2*pair)]
            kk = sl.ch(cvt4(t, acca(cb, 2*kg), acca(cb, 2*kg+1)) + kv_store(t, 524288 + (kg*8 + cb)*1024), min(kst, dl - 8*(4 - f)), before=dl)
            kst = max(kst + span, kk + 1)
    for sg in range(2, 5):
        k0 = (A7 + 7*16 + 3) if sg == 2 else endB(sg - 3)
        k = sl.dma(q_dma(sg) + (h_dma(sg) if withH else []), max(k, k0), 5)
        for rb in range(4):
            k = sl.dma(x_loads(sg, rb), max(k, B(sg - 2) + GL - 16 + 4*rb + 5), 4)
    chk = [mk(f's_cmp_eq_u32 s{S_PLC}, 0'), mk(f's_cbranch_scc1 L_samedie{tag}'), mk('buffer_wbl2 sc1'), mk('s_waitcnt vmcnt(0)'), mk(f'L_samedie{tag}:')]
    sl.raw(endB(1), chk)
    sl.ch(signal(kv_off(53), 31), endB(1) + 1)
    N = len(sl)
    post = hooks['var'](sl, base, B, endB, GL)
    k = 0
    for ds in range(4):
        for rb in range(4):
            d0, d1 = accb(4+2*ds, rb), accb(5+2*ds, rb)
            k = sl.ch(cvt4(d0, d0, d1), max(k, gstart[('B', 4, 5+2*ds)] + 4*rb + 8), before=N + 8*rb + 2 if len(sl) > N else None) if len(sl) > N or ds < 3 else k
            if len(sl) == N and ds == 3: post['first'] = post.get('first', []) + cvt4(d0, d0, d1)
    for k0, L in post.get('chains', []): sl.ch(L, k0)
    hrest = []
    if withH:
        k = 0
        for pair in range(2):
            for rb in range(4):
                d0, d1 = accb(2*pair, rb), accb(2*pair+1, rb)
                L = []
                regs = [d0+i for i in range(4)] + [d1+i for i in range(4)]
                tm = [STG[1]+i for i in range(4)]
                for h4 in range(2):
                    ops = [silu_ops(regs[4*h4+i], tm[i]) for i in range(4)]
                    for j in range(5): L += [o[j] for o in ops]
                L += cvt4(STG[0], d0, d1)
                L += [mk(f's_lshl_b32 s55, s{S_HC}, 11'), mk(f's_add_u32 s55, s55, s{S_SZ+rb}'), mk(f's_add_u32 s55, s55, {(128 + pair)*1024}'),
                      mk(f'buffer_store_dwordx4 {vr(STG[0])}, v{V_L16}, {srd(S_WS)}, s55 offen {SC1}', grp='h')]
                if hrest: hrest += L
                else:
                    k, left = sl.chain(L, max(k, gstart[('B', 4, 2*pair+1)] + 16 + 4)); hrest += left
    sl.emit(b)
    first = list(post.get('first', []))
    while first or hrest:
        if first: b.add(first.pop(0))
        if hrest: b.add(hrest.pop(0))
    for x in post.get('then', []): b.add(x)
```

```python
import re

RANGE = re.compile(r'^(-|\|)?(abs\()?([vas])\[(\d+):(\d+)\]\)?\|?$')
SINGLE = re.compile(r'^(-|\|)?(abs\()?([vas])(\d+)\)?\|?$')
TRANS = ('v_exp_f32', 'v_log_f32', 'v_rcp_f32', 'v_rsq_f32', 'v_sqrt_f32', 'v_sin_f32', 'v_cos_f32')

def regs_of(tok):
    tok = tok.strip()
    m = RANGE.match(tok)
    if m: return [f'{m.group(3)}{i}' for i in range(int(m.group(4)), int(m.group(5)) + 1)]
    m = SINGLE.match(tok)
    if m: return [f'{m.group(3)}{m.group(4)}']
    if tok in ('vcc', 'exec'): return [tok]
    if tok in ('vcc_lo', 'vcc_hi'): return ['vcc']
    if tok in ('exec_lo', 'exec_hi'): return ['exec']
    if tok == 'm0': return ['m0']
    return []

class I:
    __slots__ = ('text', 'op', 'kind', 'rd', 'wr', 'srcC', 'ab', 'grp', 'wvm', 'wlg', 'nop', 'pseudo', 'arg', 'sdata', 'dpp', 'noauto', 'obj')
    def __init__(self, text, grp=None, pseudo=None, arg=None):
        self.text = text; self.grp = grp; self.pseudo = pseudo; self.arg = arg
        self.wvm = None; self.wlg = None; self.nop = 0
        self.rd = set(); self.wr = set(); self.srcC = set(); self.ab = set(); self.sdata = set()
        self.dpp = False; self.noauto = False; self.obj = None
        if pseudo: self.op = pseudo; self.kind = 'pseudo'; return
        t = text.split(';')[0].strip()
        if t.endswith(':') or t.startswith('.'):
            self.op = 'label'; self.kind = 'label'; return
        sp = t.split(None, 1)
        op = sp[0]; self.op = op
        rest = sp[1] if len(sp) > 1 else ''
        rest = re.sub(r'op_sel(_hi)?:\[[0-9,]*\]', '', rest).strip()
        ops = [x.strip() for x in rest.split(',')] if rest else []
        mods = ''
        if ops:
            l = ops[-1].split(None, 1)
            if len(l) > 1: ops[-1] = l[0]; mods = l[1]
        R = lambda k: set(regs_of(ops[k])) if k < len(ops) else set()
        allfrom = lambda k: set(r for o in ops[k:] for r in regs_of(o))
        if op.startswith('v_mfma'):
            self.kind = 'mfma'; self.wr = R(0); self.ab = R(1) | R(2); self.srcC = R(3); self.rd = self.ab | self.srcC
        elif op.startswith('ds_read'):
            self.kind = 'ds'; self.wr = R(0); self.rd = allfrom(1)
        elif op.startswith('ds_write'):
            self.kind = 'ds'; self.rd = allfrom(0)
        elif op.startswith('ds_'):
            self.kind = 'ds'; self.wr = R(0); self.rd = allfrom(1)
        elif op.startswith('buffer_load') or op.startswith('global_load'):
            self.kind = 'vmem'
            if re.search(r'\blds\b', mods): self.rd = allfrom(0) | {'m0'}
            else: self.wr = R(0); self.rd = allfrom(1)
        elif op.startswith('buffer_store'):
            self.kind = 'vmem'; self.rd = allfrom(0); self.sdata = R(0)
        elif op.startswith('global_store'):
            self.kind = 'vmem'; self.rd = allfrom(0); self.sdata = R(1)
        elif op.startswith('buffer_atomic') or op.startswith('global_atomic'):
            self.kind = 'vmem'; self.rd = allfrom(0)
            if 'sc0' in mods: self.wr = R(0)
        elif op in ('buffer_inv', 'buffer_wbl2'):
            self.kind = 'vmem'
        elif op.startswith('s_load') or op in ('s_memtime', 's_memrealtime'):
            self.kind = 'smem'; self.wr = R(0); self.rd = allfrom(1)
        elif op in ('s_waitcnt', 's_nop', 's_barrier', 's_sleep', 's_setprio', 's_endpgm', 's_branch'):
            self.kind = 'sctl'
        elif op.startswith('s_cbranch'):
            self.kind = 'sctl'
            self.rd = {'scc'} if 'scc' in op else ({'vcc'} if 'vcc' in op else {'exec'})
        elif op.startswith('s_cmp') or op.startswith('s_bitcmp'):
            self.kind = 'salu'; self.wr = {'scc'}; self.rd = allfrom(0)
        elif op.startswith('s_'):
            self.kind = 'salu'; self.wr = R(0); self.rd = allfrom(1)
            if op.startswith('s_cselect') or op.startswith('s_addc') or op.startswith('s_subb'): self.rd |= {'scc'}
            if 'saveexec' in op: self.wr |= {'exec'}; self.rd |= {'exec'}
            if not (op.startswith('s_getreg') or op.startswith('s_mov') or op.startswith('s_cselect') or op.startswith('s_mul') or op.startswith('s_getpc') or op.startswith('s_movk')):
                self.wr |= {'scc'}
            if op in ('s_addk_i32',): self.rd |= R(0)
        elif op.startswith('v_'):
            self.kind = 'trans' if op.replace('_e32', '').replace('_e64', '') in TRANS else 'valu'
            self.wr = R(0); self.rd = allfrom(1)
            if op.startswith('v_cmpx'): self.wr |= {'exec'}
            if op.startswith('v_fmac') or op.startswith('v_dot2c') or op.startswith('v_writelane'): self.rd |= R(0)
            if op.startswith('v_permlane'): self.rd |= R(0); self.wr |= R(1)
            if op.startswith('v_add_co') or op.startswith('v_sub_co') or op.startswith('v_addc_co'):
                self.wr |= R(1); self.rd = allfrom(2)
            if op.startswith('v_pk_'): self.kind = 'valu'
            if 'dpp' in op or 'row_' in mods or 'quad_perm' in mods:
                self.dpp = True
                self.rd |= R(0)
        else:
            raise ValueError('unknown op: ' + text)

class Block:
    def __init__(self, name):
        self.name = name; self.ins = []
    def e(self, text, grp=None):
        for line in text.split('\n'):
            line = line.strip()
            if line: self.ins.append(I(line, grp=grp))
        return self.ins[-1]
    def add(self, ins): self.ins.append(ins)
    def mark(self, name): self.ins.append(I('', pseudo='mark', arg=name))
    def waitgrp(self, name, lag=0): self.ins.append(I('', pseudo='waitgrp', arg=(name, lag)))
    def waitall(self): self.ins.append(I('', pseudo='waitall'))
    def waitlds(self): self.ins.append(I('', pseudo='waitlds'))

def mk(text, grp=None, obj=None):
    x = I(text, grp=grp); x.obj = obj; return x
def mark(name): return I('', pseudo='mark', arg=name)
def waitgrp(name, lag=0): return I('', pseudo='waitgrp', arg=(name, lag))
def waitlds(): return I('', pseudo='waitlds')
def waitreg(regs):
    x = I('', pseudo='waitreg'); x.rd = set(regs); return x

WAITCNT = re.compile(r'(vmcnt|lgkmcnt)\((\d+)\)')

class Q:
    def __init__(self): self.e = {}
    def copy(self):
        q = Q(); q.e = {k: list(v) for k, v in self.e.items()}; return q
    def push(self, key, val, cap):
        for v in self.e.values(): v[0] += 1
        self.e[key] = [0] + val
        return self.retire(cap) if cap else []
    def retire(self, n):
        out = [v for v in self.e.values() if v[0] >= n]
        self.e = {k: v for k, v in self.e.items() if v[0] < n}
        return out
    def need(self, pred):
        c = [v[0] for v in self.e.values() if pred(v)]
        return min(c) if c else None
    def merge(self, o):
        for k, v in o.e.items():
            if k in self.e: self.e[k][0] = min(self.e[k][0], v[0])
            else: self.e[k] = list(v)

def _forward(path):
    out = {}; off = 0
    for b in path:
        seq = b.ins
        for k, ins in enumerate(seq):
            if ins.op.startswith('s_cbranch') or ins.op == 's_branch':
                lab = ins.text.split()[1] + ':'
                for j in range(k + 1, len(seq)):
                    if seq[j].text == lab: out[off + k] = off + j; break
        off += len(seq)
    return out

def _waits(ins):
    wv, wl = ins.wvm, ins.wlg
    if ins.op == 's_waitcnt':
        for c, v in WAITCNT.findall(ins.text):
            if c == 'vmcnt': wv = int(v) if wv is None else min(wv, int(v))
            else: wl = int(v) if wl is None else min(wl, int(v))
    return wv, wl

def autowait(paths):
    changed = True; rounds = 0
    while changed:
        changed = False; rounds += 1
        assert rounds < 20
        for path in paths:
            seq = [x for b in path for x in b.ins]
            fw = _forward(path); pend = {}
            vq = Q(); lq = Q(); marks = {}; smem = set(); dead = False
            n = len(seq)
            def setw(ins, vm, lg):
                nonlocal changed
                if vm is not None:
                    vm = min(vm, 63)
                    if ins.wvm is None or vm < ins.wvm: ins.wvm = vm; changed = True
                if lg is not None:
                    lg = min(lg, 15)
                    if ins.wlg is None or lg < ins.wlg: ins.wlg = lg; changed = True
            nd = lambda q, regs: q.need(lambda v: v[1] & regs)
            prev_real = None
            for k, ins in enumerate(seq):
                for (v2, l2, s2) in pend.pop(k, []):
                    if dead: vq, lq, smem, dead = v2, l2, s2, False
                    else: vq.merge(v2); lq.merge(l2); smem = smem | s2
                dead = False
                if prev_real is not None and prev_real.kind == 'mfma' and ins.kind not in ('label',):
                    regs = set(); j = k
                    while j < n:
                        x = seq[j]
                        if x.kind == 'label' or (x.kind == 'sctl' and x.op not in ('s_nop',)) : break
                        if x.kind != 'pseudo': regs |= x.rd | x.wr
                        if x.kind == 'mfma' or j - k > 6: break
                        j += 1
                    setw(ins, nd(vq, regs), nd(lq, regs) if not smem else None)
                regs = ins.rd | ins.wr
                if ins.kind == 'pseudo':
                    if ins.pseudo == 'mark': marks[ins.arg] = marks.get(ins.arg, 0) + 1
                    elif ins.pseudo == 'waitgrp':
                        name, lag = ins.arg; cur = marks.get(name, 0)
                        setw(ins, vq.need(lambda v: v[2] == name and v[3] <= cur - lag), None)
                    elif ins.pseudo == 'waitall': setw(ins, 0, 0)
                    elif ins.pseudo == 'waitlds': setw(ins, None, 0)
                    elif ins.pseudo == 'waitreg': setw(ins, nd(vq, regs), 0 if smem else nd(lq, regs))
                elif not ins.noauto:
                    lg = nd(lq, regs)
                    if smem & regs: lg = 0
                    elif smem and lg is not None: lg = 0
                    setw(ins, nd(vq, regs), lg)
                wv, wl = _waits(ins)
                if wv is not None: vq.retire(wv)
                if wl is not None:
                    if wl == 0: smem = set()
                    lq.retire(wl)
                if ins.kind == 'vmem': vq.push(k, [set(ins.wr), ins.grp, marks.get(ins.grp, 0)], None)
                elif ins.kind == 'ds': lq.push(k, [set(ins.wr), None, 0], None)
                elif ins.kind == 'smem': smem |= ins.wr; lq.push(k, [set(), None, 0], None)
                if k in fw:
                    pend.setdefault(fw[k], []).append((vq.copy(), lq.copy(), set(smem)))
                    if ins.op == 's_branch' and pend.get(k + 1): dead = True
                if ins.kind not in ('pseudo',): prev_real = ins

def _states(ins):
    if ins.kind in ('pseudo', 'label'):
        n = 0
    elif ins.op == 's_nop': n = int(ins.text.split()[1]) + 1
    else: n = 1
    return n

def hazards(paths, fix=True, verbose=False):
    added = []
    seqs = []
    for path in paths:
        full = [x for b in path for x in b.ins]; fw = _forward(path)
        for mode in range(3):
            seq = []; k = 0
            while k < len(full):
                seq.append(full[k])
                take = k in fw and ((mode == 1 and full[k].op != 's_branch') or (mode == 2 and full[k].op == 's_branch'))
                k = fw[k] if take else k + 1
            seqs.append(seq)
    changed = True
    while changed:
        changed = False
        for seq in seqs:
            for k, ins in enumerate(seq):
                if ins.kind in ('pseudo', 'label'): continue
                need = 0; why = ''
                dist = ins.nop + (1 if (ins.wvm is not None or ins.wlg is not None) else 0)
                j = k - 1
                isv = ins.kind in ('valu', 'trans')
                while j >= 0 and dist < 20:
                    p = seq[j]
                    req = 0
                    pv = p.kind in ('valu', 'trans')
                    vw = {r for r in p.wr if r[0] in 'va' and r != 'vcc'}
                    sw = {r for r in p.wr if r[0] == 's' and r != 'scc' or r == 'vcc'}
                    if pv:
                        if ins.kind == 'mfma' and vw & ins.rd: req = max(req, 2)
                        if ins.kind == 'mfma' and 'exec' in p.wr: req = max(req, 4)
                        if ins.dpp and vw & ins.rd: req = max(req, 2)
                        if ins.dpp and 'exec' in p.wr: req = max(req, 5)
                        if ins.op.startswith('v_permlane') and vw & ins.rd: req = max(req, 2)
                        if ins.op.startswith(('v_readlane', 'v_readfirstlane')) and vw & ins.rd: req = max(req, 1)
                        if ins.op.startswith(('v_readlane', 'v_readfirstlane', 'v_writelane', 'v_permlane')) and 'exec' in p.wr: req = max(req, 4)
                        if ins.kind == 'vmem' and sw & ins.rd: req = max(req, 5)
                        if isv and sw & ins.rd: req = max(req, 2)
                        if ins.kind in ('salu', 'sctl', 'smem') and sw & ins.rd: req = max(req, 4)
                        if p.kind == 'trans' and ins.kind != 'trans' and vw & (ins.rd | ins.wr): req = max(req, 1)
                    if p.kind == 'mfma':
                        ps = 4 if '16x16' in p.op else 8
                        t_ab = 8 if ps == 4 else 12; t_c = 6 if ps == 4 else 10; t_war = 3 if ps == 4 else 7
                        if ins.kind == 'mfma':
                            if p.wr & ins.ab: req = max(req, t_ab)
                            if p.wr & ins.srcC and p.wr != ins.srcC: req = max(req, t_c)
                            if p.wr & ins.wr and not (p.wr == ins.srcC and p.wr == ins.wr): req = max(req, t_ab)
                        else:
                            if p.wr & (ins.rd | ins.wr): req = max(req, t_ab)
                            if isv and p.srcC & ins.wr: req = max(req, t_war)
                    if p.kind == 'vmem' and len(p.sdata) >= 3 and p.sdata & ins.wr: req = max(req, 2)
                    if p.kind == 'salu' and 'm0' in p.wr and 'm0' in ins.rd: req = max(req, 1)
                    if p.kind == 'salu' and 'exec' in p.wr and (ins.dpp): req = max(req, 1)
                    if req - dist > need: need = req - dist; why = p.text
                    dist += _states(p) + p.nop + (1 if (p.wvm is not None or p.wlg is not None) else 0)
                    j -= 1
                if need > 0:
                    ins.nop += need; changed = True
                    added.append((ins.text, why, need))
    if verbose:
        for a in added: print('NOP', a)
    return added

OBJS = {}
def ldsobj(name, lo, size, part=None): OBJS[name] = (lo, lo + size, part); return name
def check_lds(paths):
    for path in paths:
        seq = [x for b in path for x in b.ins]
        fw = _forward(path); pend = {}; inskip = 0
        vq = Q(); lq = Q(); nb = 0
        wdone = {}; rdone = {}; dead = set(); seenw = set()
        def done(out):
            for v in out:
                if v[1]: (wdone if v[2] else rdone)[v[1]] = nb
        pendw = lambda o: vq.need(lambda v: v[1] == o and v[2]) is not None or lq.need(lambda v: v[1] == o and v[2]) is not None
        pendr = lambda o: lq.need(lambda v: v[1] == o and not v[2]) is not None
        for k, ins in enumerate(seq):
            for (v2, l2) in pend.pop(k, []):
                inskip -= 1
                for q, q2 in ((vq, v2), (lq, l2)):
                    for kk, v in q2.e.items():
                        if kk not in q.e and v[1]: (wdone if v[2] else rdone).pop(v[1], None)
                    q.merge(q2)
            wv, wl = _waits(ins)
            if wv is not None: done(vq.retire(wv))
            if wl is not None: done(lq.retire(wl))
            if ins.op == 's_barrier' and not inskip: nb += 1
            if ins.pseudo == 'forget': dead |= set(ins.arg)
            o = ins.obj
            isw = ins.kind == 'vmem' or ins.op.startswith('ds_write')
            if o:
                lo, hi, part = OBJS[o]
                if isw:
                    dead.discard(o)
                    for x, (l2, h2, p2) in OBJS.items():
                        if x == o and not (x in rdone or pendr(x)): continue
                        if l2 < hi and lo < h2 and x in seenw:
                            assert not pendr(x), f'{ins.text}: overwrites {x} while reads are in flight'
                            if x in ('H0', 'H1') and x not in rdone and not pendw(x) and wdone[x] < nb: dead.add(x)
                            assert x in rdone or x in dead, f'{ins.text}: overwrites {x} before it was read'
                            same = part is not None and p2 == part and l2 == lo
                            assert same or x in dead or rdone[x] < nb, f'{ins.text}: overwrites {x} without a barrier after its reads'
                            if x != o: dead.add(x)
                            else: rdone.pop(x)
                    seenw.add(o)
                else:
                    assert o not in dead, f'{ins.text}: reads {o} after it was overwritten'
                    assert o in wdone and not pendw(o), f'{ins.text}: reads {o} before its writes are done'
                    assert part is not None or wdone[o] < nb, f'{ins.text}: reads {o} without a barrier after its writes'
            if ins.kind == 'vmem': done(vq.push(k, [o, True], 63))
            elif ins.kind in ('ds', 'smem'): lq.push(k, [o, isw], None)
            if k in fw:
                pend.setdefault(fw[k], []).append((vq.copy(), lq.copy())); inskip += 1

def render(blocks):
    out = []
    for b in blocks:
        for ins in b.ins:
            w = []
            if ins.wvm is not None: w.append(f'vmcnt({ins.wvm})')
            if ins.wlg is not None: w.append(f'lgkmcnt({ins.wlg})')
            if w: out.append('s_waitcnt ' + ' '.join(w))
            n = ins.nop
            while n > 0:
                m = min(n, 16); out.append(f's_nop {m-1}'); n -= m
            if ins.kind != 'pseudo': out.append(ins.text)
    return '\n'.join(out) + '\n'

BINDS = []
def bind(items):
    last = {}
    for it in items:
        for r in it.rd:
            if r in last: BINDS.append((it, r, last[r]))
        for r in it.wr:
            last[r] = it
def check_binds(paths):
    want = {}
    for c, r, p in BINDS: want.setdefault(id(c), []).append((r, p))
    for path in paths:
        last = {}
        for ins in (x for b in path for x in b.ins):
            for r, p in want.get(id(ins), []):
                assert last.get(r) is p, f'binding broken: {ins.text} reads {r} from {last.get(r).text if last.get(r) else None}, wanted {p.text}'
            for r in ins.wr: last[r] = ins

class Slots:
    def __init__(self):
        self.m = []; self.sc = []; self.mem = []; self.va = []; self.post = {}
    def add(self, text):
        self.m.append(I(text)); self.sc.append([]); self.mem.append([]); self.va.append([]); return len(self.m) - 1
    def __len__(self): return len(self.m)
    def _cls(self, ins):
        return 'sc' if ins.kind in ('salu', 'sctl', 'pseudo', 'smem', 'label') else ('mem' if ins.kind in ('ds', 'vmem') else 'va')
    def put(self, k, ins):
        if isinstance(ins, str): ins = I(ins)
        assert 0 <= k < len(self.m), (k, len(self.m), ins.text)
        getattr(self, self._cls(ins))[k].append(ins); return k
    def used(self, k):
        u = 0
        for x in self.mem[k]: u += 8 if x.kind == 'vmem' else 4
        for x in self.va[k]: u += 8 if x.kind == 'trans' else 4
        return u
    def fits(self, k, ins):
        c = self._cls(ins)
        if c == 'sc': return ins.kind == 'pseudo' or not any(x.kind != 'pseudo' for x in self.sc[k])
        if c == 'mem':
            if self.mem[k]: return False
            return self.used(k) + (8 if ins.kind == 'vmem' else 4) <= 8
        return self.used(k) + (8 if ins.kind == 'trans' else 4) <= 8
    def place(self, ins, k):
        if isinstance(ins, str): ins = I(ins)
        while k < len(self.m) and not self.fits(k, ins): k += 1
        if k >= len(self.m): return None
        return self.put(k, ins)
    def chain(self, items, k, minstep=0):
        order = {'sc': 0, 'mem': 1, 'va': 2}
        prev = None; lastmem = None
        items = [I(x) if isinstance(x, str) else x for x in items]
        bind(items)
        for n, it in enumerate(items):
            kk = k; c = self._cls(it)
            if prev is not None:
                if 'm0' in prev.wr and 'm0' in it.rd: kk = k + 1
                if order[c] < order[self._cls(prev)]: kk = k + 1
                if c == 'mem' and self._cls(prev) == 'mem': kk = k + 1
            if c == 'mem' and lastmem is not None: kk = max(kk, lastmem + minstep)
            r = self.place(it, kk)
            if r is None: return k, list(items[n:])
            if c == 'mem': lastmem = r
            k = r; prev = it
        return k, []
    def raw(self, k, items):
        self.post.setdefault(k, []).extend(I(x) if isinstance(x, str) else x for x in items)
    def emit(self, blk):
        for k in range(len(self.m)):
            blk.add(self.m[k])
            for x in self.sc[k] + self.mem[k] + self.va[k] + self.post.get(k, []): blk.add(x)
```

```python
import os
from common import *
from ab import qreg, Str, SC1, kv_off

V_CUR, V_NXT, V_DMA = 10, 11, 24
def S(kb2, qb): return 32 + (kb2*4 + qb)*4
def P(par, qb): return 64 + (par*4 + qb)*4
def CM(par, kb2, qb): return (96 + (kb2*4 + qb)*4) if par == 0 else ((144, 176)[kb2] + qb*4)
L_, NEGM, TMP = 208, 212, 216
TMP2 = 240
def O(db, qb): return 128 + (db*4 + qb)*4
def FR(buf, i): return 64 + (buf*4 + i)*4
sT, sNA, sNB, sNT, sKO, sVO, sSL, sEV, sFLAG, sREDO = 56, 57, 58, 59, 60, 61, 62, 63, 64, 65
sN4 = 19
sTRI = 68
sKB = 75 + 0
K0_LDS = 128 * 1024
NINF = '0xff800000'
THR = 0x53800000

def setup_scalar():
    L = []; e = lambda t: L.append(mk(t))
    e(f's_lshr_b32 s3, s{S_W}, 1')
    e(f's_lshl_b32 s{sNA}, s{S_P}, 1')
    e(f's_sub_u32 s{sNT}, 32, s{sNA}')
    e(f's_sub_u32 s{sNB}, s{sNT}, s3')
    e(f's_add_u32 s{sNA}, s{sNA}, s3')
    e(f's_add_u32 s{sNA}, s{sNA}, 1')
    e(f'v_add_u32 v{V_DMA}, s{S_W4K}, v{V_L16}')
    return L
def reset_stream():
    L = []; e = lambda t: L.append(mk(t))
    e(f's_lshl_b32 s{sVO}, s{S_H}, 20')
    e(f's_add_u32 s{sKO}, s{sVO}, {KV_OFF + 8192}')
    e(f's_add_u32 s{sVO}, s{sVO}, {KV_OFF + 524288}')
    e(f's_mov_b32 s{sSL}, s{S_W4K}')
    return L
def k0_dma():
    L = []; e = lambda t, g=None: L.append(mk(t, grp=g))
    e(f's_lshr_b32 s54, s{S_W4K}, 1')
    e(f's_add_u32 m0, s54, {K0_LDS}')
    e(f's_add_u32 s54, s54, s{sKO}')
    e(f's_sub_u32 s54, s54, 8192')
    for n in range(2): e(f'buffer_load_dwordx4 v{V_L16}, {srd(S_WS)}, s54 offen offset:{n*1024} sc1 lds', 'st')
    return L
def dma_k(n): return mk(f'buffer_load_dwordx4 v{V_DMA}, {srd(S_WS)}, s{sKO} offen offset:{n*1024} sc1 lds', grp='st')
def dma_v(n): return mk(f'buffer_load_dwordx4 v{V_DMA}, {srd(S_WS)}, s{sVO} offen offset:{n*1024} sc1 lds', grp='st')
def m0_k(): return mk(f's_mov_b32 m0, s{sSL}')
def m0_v(): return mk(f's_add_u32 m0, s{sSL}, 16384')
def advance():
    return [mk(f's_add_u32 s{sKO}, s{sKO}, 16384'), mk(f's_add_u32 s{sVO}, s{sVO}, 16384'),
            mk(f's_add_u32 s{sSL}, s{sSL}, 32768'), mk(f's_and_b32 s{sSL}, s{sSL}, 0x1ffff')]
def full_batch():
    return [mark('st'), m0_k()] + [dma_k(n) for n in range(4)] + [m0_v()] + [dma_v(n) for n in range(4)] + advance()

def exp_ops(par, kb2, qb, i):
    s = S(kb2, qb)
    E = mk(f'v_exp_f32 v{s+i}, v{s+i}')
    A = mk(f'v_add_f32 v{L_+qb}, v{L_+qb}, v{s+i}')
    C = mk(f'v_cvt_pk_bf16_f32 v{P(par, qb) + 2*kb2 + (i>>1)}, v{s+i-1}, v{s+i}') if i & 1 else None
    return E, A, C
def exp_block_plain(b, par, kb2, qb):
    ops = [exp_ops(par, kb2, qb, i) for i in range(4)]
    for E, A, C in ops: b.add(E)
    for E, A, C in ops:
        b.add(A)
        if C: b.add(C)

NPRE = 3

def body(b, qbs, last=False, hooks={}):
    nq = len(qbs); G = 4 * nq
    sl = Str()
    def qk(par, buf0):
        for kb2 in range(2):
            for qb in qbs:
                for ds in range(4):
                    d = vr(S(kb2, qb))
                    sl.add(f'{MF} {d}, {ar(FR(buf0 + kb2, ds))}, {vr(qreg(qb, ds))}, {vr(CM(par, kb2, qb)) if ds == 0 else d}')
    def pv(par, buf0):
        for db in range(8):
            for qb in qbs:
                o = ar(O(db, qb))
                sl.add(f'{MF} {o}, {ar(FR(buf0 + (db >> 2), db & 3))}, {vr(P(par, qb))}, {o}')
    def rd(buf, i, reg, off): return mk(f'ds_read_b128 {ar(FR(buf, i))}, v{reg} offset:{off}')
    kf = lambda kh, kb2, i: kh*8192 + (kb2*4 + i)*1024
    vf = lambda vh, hf, i: 16384 + vh*8192 + (hf*4 + i)*1024
    blocks = [(kb2, qb) for kb2 in range(2) for qb in qbs]
    tau = 2 * nq
    npend = tau // 4
    qk(1, 0); pv(0, 2)
    if not last:
        qk(0, 0); pv(1, 2)
        reads = [[rd(2, i, V_CUR, vf(0, 0, i)) for i in range(4)], [rd(3, i, V_CUR, vf(0, 1, i)) for i in range(4)],
                 [rd(0, i, V_CUR, kf(1, 0, i)) for i in range(4)], [rd(1, i, V_CUR, kf(1, 1, i)) for i in range(4)],
                 [rd(2, i, V_CUR, vf(1, 0, i)) for i in range(4)], [rd(3, i, V_CUR, vf(1, 1, i)) for i in range(4)],
                 [rd(0, i, V_NXT, kf(0, 0, i)) for i in range(4)], [rd(1, i, V_NXT, kf(0, 1, i)) for i in range(4)]]
        stream = [(0, *bl) for bl in blocks[-npend:]] + [(1, *bl) for bl in blocks] + [(0, *bl) for bl in blocks[:-npend]]
    else:
        reads = [[rd(2, i, V_CUR, vf(0, 0, i)) for i in range(4)], [rd(3, i, V_CUR, vf(0, 1, i)) for i in range(4)],
                 [rd(0, i, V_CUR, vf(1, 0, i)) for i in range(4)], [rd(1, i, V_CUR, vf(1, 1, i)) for i in range(4)]]
        stream = [(0, *bl) for bl in blocks[-npend:]] + [(1, *bl) for bl in blocks]
    npair = len(sl) // 2
    rstep = G // 8
    for g, R in enumerate(reads):
        for i, x in enumerate(R): sl.put(g*G + 2*i*rstep + 1, x)
    rest = []
    for n, (par, kb2, qb) in enumerate(stream):
        if 4*n >= npair: rest.append((par, kb2, qb)); continue
        for i in range(4):
            E, A, C = exp_ops(par, kb2, qb, i)
            pr = 4*n + i
            sl.put(2*pr, E); sl.put(2*pr + 1, A)
            if C: sl.put(2*pr + 1, C)
    if not last:
        N = len(sl); kb = 6*G
        step = max(2, (G * 5 // 8) & ~1)
        seq = [dma_k(n) for n in range(NPRE, 4)] + [m0_v()] + [dma_v(n) for n in range(4)]
        k = 2
        for x in seq:
            if x.kind == 'vmem': sl.put(k, x); k += step
            else: sl.put(k - 2, x)
        adv = advance() + [mk(f's_add_u32 s3, s{sT}, 3'), mk(f's_cmp_lt_u32 s3, s{sNT}'),
                           mk(f's_cselect_b32 s{sKO}, s{sKO}, {OOB}'), mk(f's_cselect_b32 s{sVO}, s{sVO}, {OOB}'), m0_k()]
        k = k - step + 1
        for x in adv: sl.put(k, x); k += 1
        assert k < kb, (k, kb)
        sl.put(kb, waitgrp('st', 1)); sl.put(kb, mk('s_barrier')); sl.put(kb, mark('st'))
        k = kb + 2
        for n in range(NPRE): sl.put(k, dma_k(n)); k += step
        assert k - step < N
        sl.put(N - 5, mk(f'v_mov_b32 v{V_CUR}, v{V_NXT}')) if False else None
        sl.raw(N - 1, [mk(f'v_mov_b32 v{V_CUR}, v{V_NXT}'), mk(f'v_add_u32 v{V_NXT}, 0x8000, v{V_NXT}'), mk(f'v_and_b32 v{V_NXT}, 0x1ffff, v{V_NXT}')])
        sl.put(N - 3, mk(f's_add_u32 s{sT}, s{sT}, 1'))
        sl.put(N - 2, mk(f's_cmp_lg_u32 s{sT}, s{sEV}'))
        sl.emit(b)
    else:
        w0, zz = hooks.get('d_early', lambda: ([], []))()
        k = 2
        for x in w0:
            sl.put(k, x)
            k += 2 if x.kind == 'vmem' else 1
        sl.emit(b)
        b.e(f's_cmp_ge_u32 s{S_W}, 2')
        b.e('s_cbranch_scc0 L_at_nobar')
        b.add(waitgrp('st', 0))
        b.e('s_barrier')
        b.e('L_at_nobar:')
        for x in zz[:5]: b.add(x)
        for par, kb2, qb in rest: exp_block_plain(b, par, kb2, qb)
        sl = Str(); pv(1, 0)
        _, left = sl.chain(zz[5:], 0); sl.emit(b)
        for x in left: b.add(x)

def fill_cm(b, par, qbs, val=None):
    for kb2 in range(2):
        for qb in qbs:
            for i in range(4): b.e(f'v_mov_b32 v{CM(par, kb2, qb)+i}, {val if val else "v%d" % (NEGM+qb)}')
def diag_cm(b, par, q0):
    b.e(f'v_mov_b32 v{TMP}, {NINF}')
    for i in range(4):
        m = f's[{sTRI+2*i}:{sTRI+2*i+1}]'
        b.e(f'v_cndmask_b32 v{CM(par, 0, q0)+i}, v{NEGM+q0}, v{TMP}, {m}')
        b.e(f'v_mov_b32 v{CM(par, 0, q0+1)+i}, v{NEGM+q0+1}')
        b.e(f'v_mov_b32 v{CM(par, 1, q0)+i}, v{TMP}')
        b.e(f'v_cndmask_b32 v{CM(par, 1, q0+1)+i}, v{NEGM+q0+1}, v{TMP}, {m}')
cnt = [0]
def mask(b, half, q0):
    cnt[0] += 1; n = cnt[0]
    b.e(f's_bitcmp1_b32 s{S_W}, 0')
    diag_if_odd = (half == 1) == (q0 == 0)
    b.e(f's_cbranch_scc{0 if diag_if_odd else 1} L_mk{n}a')
    diag_cm(b, half, q0)
    if half == 1:
        b.e(f's_branch L_mk{n}b')
        b.e(f'L_mk{n}a:')
        fill_cm(b, 1, (q0, q0+1), NINF)
        b.e(f'L_mk{n}b:')
    else:
        b.e(f'L_mk{n}a:')

def epilogue(b, q0):
    e = b.e
    for qb in (q0, q0 + 1):
        l = L_ + qb; t = TMP + (qb & 1)
        e(f'v_mov_b32 v{t}, v{l}')
    for qb in (q0, q0 + 1):
        l = L_ + qb; t = TMP + (qb & 1)
        e(f'v_permlane16_swap_b32 v{l}, v{t}')
        e(f'v_add_f32 v{l}, v{l}, v{t}')
        e(f'v_mov_b32 v{t}, v{l}')
    for qb in (q0, q0 + 1):
        l = L_ + qb; t = TMP + (qb & 1)
        e(f'v_permlane32_swap_b32 v{l}, v{t}')
        e(f'v_add_f32 v{l}, v{l}, v{t}')
    e(f'v_max_f32 v{TMP+2}, v{L_+q0}, v{L_+q0+1}')
    e(f'v_cmp_nle_f32 vcc, v{TMP+2}, v{TMP+3}')
    for qb in (q0, q0 + 1): e(f'v_rcp_f32 v{TMP + (qb&1)}, v{L_+qb}')
    e(f's_or_b32 s3, vcc_lo, vcc_hi')
    e(f's_or_b32 s{sFLAG}, s{sFLAG}, s3')
    n = 0
    for qb in (q0, q0 + 1):
        e(f's_lshl_b32 s55, s{S_H}, 12')
        e(f's_add_u32 s55, s55, s{S_SZ+qb}')
        for ds in range(4):
            t = TMP2 + (n & 1) * 8; n += 1
            for hb in range(2):
                for i in range(4): e(f'v_accvgpr_read_b32 v{t+4*hb+i}, a{O(2*ds+hb, qb)+i}')
            for i in range(8): e(f'v_mul_f32 v{t+i}, v{t+i}, v{TMP + (qb&1)}')
            for i in range(4): e(f'v_cvt_pk_bf16_f32 v{t+i}, v{t+2*i}, v{t+2*i+1}')
            e(f'buffer_store_dwordx4 {vr(t)}, v{V_L16}, {srd(S_WS)}, s55 offen offset:{ds*1024} {SC1}', grp='ctx')

def xmax(b, v, t):
    for sw in ('16', '32'):
        b.e(f'v_mov_b32 v{t}, v{v}')
        b.e(f'v_permlane{sw}_swap_b32 v{v}, v{t}')
        b.e(f'v_max_f32 v{v}, v{v}, v{t}')

def qk0():
    return [f'{MF} {vr(S(kb2, qb))}, {ar(FR(2 + kb2, ds))}, {vr(qreg(qb, ds))}, {vr(S(kb2, qb)) if ds else 0}'
            for qb in range(4) for kb2 in range(2) for ds in range(4)]
def first_reads(annot=True):
    L = [mk(f'v_mov_b32 v{V_CUR}, v{V_L16}'), mk(f'v_add_u32 v{V_NXT}, {K0_LDS}, v{V_L16}')]
    L += [mk(f'ds_read_b128 {ar(FR(2+kb2, i))}, v{V_NXT} offset:{(kb2*4+i)*1024}', obj='K0' if annot else None) for kb2 in range(2) for i in range(4)]
    L += [mk(f'ds_read_b128 {ar(FR(kb2, i))}, v{V_CUR} offset:{(kb2*4+i)*1024}', obj='S0' if annot else None) for kb2 in range(2) for i in range(4)]
    return L + [mk(f'v_add_u32 v{V_NXT}, 0x8000, v{V_L16}')]
def first_mask(tag):
    L = [mk(f's_add_u32 s3, s{S_P}, s{S_W}'), mk('s_cmp_eq_u32 s3, 0'), mk(f's_cbranch_scc0 L_at_nm{tag}'), mk(f'v_mov_b32 v{TMP}, {NINF}')]
    for i in range(4):
        m = f's[{sTRI+2*i}:{sTRI+2*i+1}]'
        L += [mk(f'v_cndmask_b32 v{S(0,0)+i}, v{S(0,0)+i}, v{TMP}, {m}'), mk(f'v_mov_b32 v{S(1,0)+i}, v{TMP}'),
              mk(f'v_cndmask_b32 v{S(1,1)+i}, v{S(1,1)+i}, v{TMP}, {m}')]
    return L + [mk(f'L_at_nm{tag}:')]
def lane_max(qb):
    a = S(0, qb); c = S(1, qb); m = NEGM + qb
    return [mk(f'v_max3_f32 v{m}, v{a}, v{a+1}, v{a+2}'), mk(f'v_max3_f32 v{m}, v{m}, v{a+3}, v{c}'),
            mk(f'v_max3_f32 v{m}, v{m}, v{c+1}, v{c+2}'), mk(f'v_max_f32 v{m}, v{m}, v{c+3}')]
def cross_max():
    L = []
    for sw in ('16', '32'):
        L += [mk(f'v_mov_b32 v{TMP2+qb}, v{NEGM+qb}') for qb in range(4)]
        L += [mk(f'v_permlane{sw}_swap_b32 v{NEGM+qb}, v{TMP2+qb}') for qb in range(4)]
        L += [mk(f'v_max_f32 v{NEGM+qb}, v{NEGM+qb}, v{TMP2+qb}') for qb in range(4)]
    return L + [mk(f'v_sub_f32 v{NEGM+qb}, 0, v{NEGM+qb}') for qb in range(4)]
def start_consts():
    return [mk(f's_sub_u32 s{sN4}, s{sNT}, 4'), mk(f'v_mov_b32 v{TMP+3}, {hex(THR)}'), mk(f's_mov_b32 s{sT}, 0'), mk(f's_mov_b32 s{sFLAG}, 0')] + [mk(f'v_mov_b32 v{L_+qb}, 0') for qb in range(4)]
def pkfill(par):
    L = []
    for kb2 in range(2):
        for qb in range(4):
            n = NEGM + (qb & ~1); o = qb & 1
            L += [mk(f'v_pk_mov_b32 {vr(CM(par, kb2, qb) + i, 2)}, {vr(n, 2)}, {vr(n, 2)} op_sel:[{o},{o}]') for i in (0, 2)]
    return L
def start_rest1():
    L = []
    for kb2 in range(2):
        for qb in range(4):
            n = NEGM + (qb & ~1); o = qb & 1
            L += [mk(f'v_pk_add_f32 {vr(S(kb2, qb) + i, 2)}, {vr(S(kb2, qb) + i, 2)}, {vr(n, 2)} op_sel:[0,{o}] op_sel_hi:[1,{o}]') for i in (0, 2)]
    return L + pkfill(1)
def start_rest2():
    b = Block('x')
    for x in pkfill(0): b.add(x)
    for j in range(6): exp_block_plain(b, 0, j >> 2, j & 3)
    return b.ins

def gen(hooks):
    hk = lambda n, b: hooks.get(n, lambda b: None)(b)
    pro = Block('at_pro'); e = pro.e
    e('L_at_again:')
    for i in range(128): e(f'v_accvgpr_write_b32 a{128+i}, 0')
    e('s_barrier')
    for x in first_reads(False): pro.add(x)
    for x in [mark('st'), m0_k()] + [dma_k(n) for n in range(NPRE)]: pro.add(x)
    for t in qk0(): e(t)
    e('s_nop 7')
    for x in first_mask('r') + start_consts() + start_rest1() + start_rest2(): pro.add(x)
    e('s_branch L_at_disp')
    dp = Block('at_disp'); e = dp.e
    e('L_at_disp:')
    e(f's_cmp_eq_u32 s{sT}, 2')
    e('s_cbranch_scc0 L_at_d0')
    e(f's_cmp_eq_u32 s{sREDO}, 0')
    e('s_cbranch_scc0 L_at_d0')
    for x in signal([mk(f's_lshl_b32 s53, s{S_P}, 8'), mk(f's_add_u32 s53, s53, {C_PRE}')], TMP): dp.add(x)
    e(f's_lshl_b32 s3, s2, 2')
    e(f's_add_u32 s3, s3, s{S_W}')
    e(f'v_lshlrev_b32 v29, 3, v{V_L16}')
    e(f's_mul_i32 s53, s3, 5120')
    e(f's_mul_i32 s3, s3, 2176')
    e(f'buffer_load_dword v27, v29, {srd(S_WO)}, s53 offen')
    e(f'v_min_u32 v29, 2048, v29')
    e(f'buffer_load_dword v28, v29, {srd(S_W2)}, s3 offen')
    e('L_at_d0:')
    e(f's_add_u32 s3, s{sT}, 4')
    e(f's_cmp_eq_u32 s3, s{sNT}')
    e('s_cbranch_scc0 L_at_d0b')
    hk('at_setup', dp)
    e('L_at_d0b:')
    e(f's_add_u32 s3, s{sT}, 2')
    e(f's_cmp_eq_u32 s3, s{sNT}')
    e('s_cbranch_scc0 L_at_d0c')
    hk('at_check', dp)
    e('L_at_d0c:')
    e(f's_add_u32 s3, s{sT}, 2')
    e(f's_cmp_eq_u32 s3, s{sNB}')
    e('s_cbranch_scc0 L_at_d1')
    mask(dp, 0, 2)
    e('L_at_d1:')
    e(f's_cmp_ge_u32 s{sT}, s{sNA}')
    e('s_cbranch_scc1 L_at_dB')
    e(f's_add_u32 s3, s{sT}, 2')
    e(f's_cmp_eq_u32 s3, s{sNA}')
    e('s_cbranch_scc0 L_at_d2')
    mask(dp, 0, 0)
    e('L_at_d2:')
    e(f's_add_u32 s{sEV}, s{sT}, 1')
    e(f's_cmp_eq_u32 s{sEV}, s{sNA}')
    e('s_cbranch_scc0 L_at_d3')
    mask(dp, 1, 0)
    fill_cm(dp, 0, (0, 1), NINF)
    e('L_at_d3:')
    e(f's_sub_u32 s3, s{sNA}, 2')
    e(f's_max_i32 s{sEV}, s{sEV}, s3')
    e(f's_cmp_lt_u32 s{sT}, 2')
    e(f's_cselect_b32 s3, 2, s{sN4}')
    e(f's_cmp_lt_u32 s{sT}, s3')
    e(f's_cselect_b32 s3, s3, 64')
    e(f's_min_u32 s{sEV}, s{sEV}, s3')
    dual = Block('at_dual'); dual.e('.p2align 5'); dual.e('L_at_dual:')
    body(dual, (0, 1, 2, 3))
    dual.e('s_cbranch_scc1 L_at_dual')
    dual.e('s_branch L_at_disp')
    dB = Block('at_dB'); e = dB.e
    e('L_at_dB:')
    e(f's_cmp_eq_u32 s{sT}, s{sNA}')
    e('s_cbranch_scc0 L_at_dB2')
    tr = Block('at_tr')
    hk('at3', tr)
    exp_block_plain(tr, 0, 1, 2)
    tr.e(f's_cmp_lt_u32 s{S_W}, 2')
    tr.e('s_cbranch_scc0 L_at_tre')
    epilogue(tr, 0)
    tr.e('L_at_tre:')
    dC = Block('at_dC'); e = dC.e
    e('L_at_dB2:')
    e(f's_add_u32 s{sEV}, s{sT}, 1')
    e(f's_cmp_eq_u32 s{sEV}, s{sNB}')
    e('s_cbranch_scc1 L_at_last')
    e(f's_sub_u32 s3, s{sNB}, 2')
    e(f's_max_u32 s{sEV}, s{sEV}, s3')
    e(f's_cmp_lt_u32 s{sT}, 2')
    e(f's_cselect_b32 s3, 2, s{sN4}')
    e(f's_cmp_lt_u32 s{sT}, s3')
    e(f's_cselect_b32 s3, s3, 64')
    e(f's_min_u32 s{sEV}, s{sEV}, s3')
    single = Block('at_single'); single.e('.p2align 5'); single.e('L_at_single:')
    body(single, (2, 3))
    single.e('s_cbranch_scc1 L_at_single')
    single.e('s_branch L_at_disp')
    last = Block('at_last'); last.e('L_at_last:')
    mask(last, 1, 2)
    body(last, (2, 3), last=True, hooks=hooks)
    hk('at4', last)
    epilogue(last, 2)
    last.e(f's_cmp_lt_u32 s{S_W}, 2')
    last.e('s_cbranch_scc1 L_at_done')
    epilogue(last, 0)
    last.e('L_at_done:')
    redo = gen_redo()
    dpB = Block('at_disp_toB')
    k = next(i for i, x in enumerate(dp.ins) if x.text == 's_cbranch_scc1 L_at_dB')
    dpB.ins = dp.ins[:k + 1]
    blocks = [dp, dual, dB, tr, dC, single, last]
    tails = [[dp, dual, dual, dual, dp, dual, dpB, dB, tr, dC, single, single, single, dpB, dB, dC, single, dpB, dB, dC, last],
             [dp, dual, dpB, dB, tr, dC, last], [dp, dual, dpB, dB, tr, dC, single, dpB, dB, dC, last]]
    redo.ins += pro.ins
    return blocks, tails, redo

def gen_redo():
    b = Block('redo'); e = b.e
    e('L_redo:')
    e('s_waitcnt vmcnt(0) lgkmcnt(0)')
    e('s_barrier')
    e(f's_mov_b32 s{sREDO}, -1')
    for qb in range(4): e(f'v_mov_b32 v{L_+qb}, {NINF}')
    for qb in range(4): e(f'v_mov_b32 v{NEGM+qb}, 0')
    e(f's_lshl_b32 s{sKO}, s{S_H}, 20')
    e(f's_add_u32 s{sKO}, s{sKO}, {KV_OFF}')
    e(f's_lshr_b32 s54, s{S_W4K}, 1')
    e(f's_add_u32 s{sKO}, s{sKO}, s54')
    e(f's_mov_b32 s{sT}, 0')
    e(f's_lshl_b32 s{sVO}, s{S_P}, 2')
    e(f's_add_u32 s{sVO}, s{sVO}, s{S_W}')
    e(f's_sub_u32 s{sSL}, 63, s{sVO}')
    e(f's_lshl_b32 s{sEV}, s{sNT}, 1')
    e('L_redo_loop:')
    e(f's_mov_b32 m0, s54')
    e('s_nop 0')
    for n in range(2): e(f'buffer_load_dwordx4 v{V_L16}, {srd(S_WS)}, s{sKO} offen offset:{n*1024} sc1 lds')
    for q0, sd in ((0, sVO), (2, sSL)):
        e(f's_cmp_eq_u32 s{sT}, s{sd}')
        e(f's_cbranch_scc1 L_redo_d{q0}')
        e(f's_cmp_lt_u32 s{sT}, s{sd}')
        e(f's_cselect_b32 s3, 0, {NINF}')
        fill_cm(b, 0, (q0, q0 + 1), 's3')
        e(f's_branch L_redo_e{q0}')
        e(f'L_redo_d{q0}:')
        diag_cm(b, 0, q0)
        e(f'L_redo_e{q0}:')
    e('s_waitcnt vmcnt(0)')
    e('s_barrier')
    for kb2 in range(2):
        for i in range(4): e(f'ds_read_b128 {ar(FR(kb2, i))}, v{V_L16} offset:{(kb2*4+i)*1024}')
    e('s_waitcnt lgkmcnt(0)')
    e('s_barrier')
    for kb2 in range(2):
        for qb in range(4):
            for ds in range(4):
                d = vr(S(kb2, qb))
                e(f'{MF} {d}, {ar(FR(kb2, ds))}, {vr(qreg(qb, ds))}, {vr(CM(0, kb2, qb)) if ds == 0 else d}')
    e('s_nop 7')
    for qb in range(4):
        for kb2 in range(2):
            a = S(kb2, qb)
            e(f'v_max3_f32 v{L_+qb}, v{L_+qb}, v{a}, v{a+1}')
            e(f'v_max3_f32 v{L_+qb}, v{L_+qb}, v{a+2}, v{a+3}')
    e(f's_add_u32 s{sKO}, s{sKO}, 8192')
    e(f's_add_u32 s{sT}, s{sT}, 1')
    e(f's_cmp_lt_u32 s{sT}, s{sEV}')
    e('s_cbranch_scc1 L_redo_loop')
    for qb in range(4):
        xmax(b, L_ + qb, TMP)
        e(f'v_sub_f32 v{NEGM+qb}, 0, v{L_+qb}')
    e(f'v_add_u32 v{V_DMA}, s{S_W4K}, v{V_L16}')
    for x in reset_stream() + [mark('st')] + k0_dma() + full_batch()[1:] + full_batch(): b.add(x)
    e('s_waitcnt vmcnt(0)')
    return b

def b4_hook(sl, base, B, endB, GL, tag, hooks):
    pk = Poll('kv', S_WS, 1, 256, 8, (18, 19, 20), sleep=8)
    sl.ch(kv_off(1) + pk.issue(), B(3) + GL // 2)
    sl.ch(setup_scalar() + reset_stream() + [mk(f's_mov_b32 s{sREDO}, 0')], B(3) + 4)
    tri = [mk(f'v_lshrrev_b32 v2, 6, v{V_L16}'), mk('v_and_b32 v2, 12, v2'), mk(f'v_bfe_u32 v3, v{V_L16}, 4, 4')]
    for i in range(4): tri += [mk(f'v_add_u32 v4, {i}, v2'), mk(f'v_cmp_gt_u32 s[{sTRI+2*i}:{sTRI+2*i+1}], v4, v3')]
    sl.ch(tri + [mk(f'v_accvgpr_write_b32 a{128+i}, 0') for i in range(128)], B(2), before=B(4))
    sl.raw(B(4) - 17, pk.check(tag))
    items = [mark('st')] + k0_dma() + full_batch()[1:] + full_batch()
    n = 0
    for x in items:
        if x.kind == 'vmem':
            x.obj = ldsobj('K0', K0_LDS, 8192) if n < 2 else ldsobj(f'S{(n-2)//8}', ((n-2)//8)*32768, 32768); n += 1
    k = sl.ch(items, B(4) + 2, 4)
    N = len(sl)
    assert k < N - 17
    for t in qk0(): sl.add(t)
    sl.put(N - 16, waitgrp('st', 1)); sl.put(N - 16, waitlds()); sl.put(N - 16, mk('s_barrier'))
    fr = first_reads()
    sl.put(N - 17, fr[0]); sl.put(N - 17, fr[1])
    for j, x in enumerate(fr[2:10]): sl.put(N - 15 + j, x)
    for j, x in enumerate(fr[10:18]): sl.put(N - 6 + 2*j, x)
    sl.put(N + 10, fr[18])
    sl.put(N + 11, I('', pseudo='forget', arg=('S0', 'S1', 'K0')))
    sl.ch([mark('st'), m0_k()] + [dma_k(n) for n in range(NPRE)], N - 7, 4)
    sl.raw(N + 21, first_mask(tag))
    post = {'chains': [(N + 22, lane_max(0) + lane_max(1)), (N + 28, lane_max(2))],
            'first': start_consts() + lane_max(3) + cross_max() + start_rest1(), 'then': start_rest2()}
    if 'at2' in hooks:
        bb = Block('s'); hooks['at2'](bb); post['then'] = post['then'] + bb.ins
    return post
```

```python
import os
from common import *
from ab import Str, barrier_at, cvt4
import attn

WF = 32
def acc(nb, rb): n = nb*4 + rb; return 64 + 4*n if n < 16 else 144 + 4*(n - 16)
ZB = (0, 64, 128, 192)
def zf(sg, rb, s4): return ZB[sg % 4] + (rb*4 + s4)*4
VD = 26
VT = 4
VX = 12
VE = 13
XR = 208
VP = (22, 23, 25)
PPRE = Poll('pre', S_WS, 8, 256, 32, VP, sleep=8)
PCTX = Poll('ctx', S_WS, 1, 256, 32, VP, sleep=8)
PEX = Poll('ex', S_WS, 1, 256, 4, VP, sleep=2)
sZ = 76
sKQ, sCT, sPP, sWR, sPX, sWL = 12, 13, 14, 15, 16, 18
STEPS = [4, 4, 4, 2] + [4]*8
NS = len(STEPS)
WL = [136*1024, 0, 24576, 49152]
def wl(sg): return WL[sg % 4]
FLAG_LDS = 135 * 1024
OWN_LDS = 80 * 1024
PX_OFF = 96 << 20
DONLY = os.environ.get('DONLY')

def ids(kq, ct, pp):
    return [mk(f's_and_b32 s{kq}, s2, 3'), mk(f's_lshr_b32 s{ct}, s2, 3'), mk(f's_lshr_b32 s{pp}, s{ct}, 3'), mk(f's_and_b32 s{ct}, s{ct}, 7'),
            mk(f's_and_b32 s3, s2, 4'), mk(f's_add_u32 s{pp}, s{pp}, s3')]

def setup():
    L = ids(sKQ, sCT, sPP); e = lambda t: L.append(mk(t))
    e(f's_mul_i32 s51, s{sKQ}, 14')
    e(f's_min_u32 s51, s51, 41')
    e(f's_mul_i32 s52, s{sCT}, 160')
    e(f's_and_b32 s52, s52, -64')
    e(f's_add_u32 s3, s51, s{S_W}')
    e(f's_mul_i32 s{sWR}, s3, {32*1280}')
    e(f's_add_u32 s{sWR}, s{sWR}, s52')
    e(f's_lshl_b32 s3, s{sKQ}, 5')
    e(f's_add_u32 s3, s3, s{S_W}')
    e(f's_mul_i32 s{sWL+1}, s3, {32*1280}')
    e(f's_add_u32 s{sWL+1}, s{sWL+1}, s52')
    e(f's_mul_i32 s{sWL}, s{S_W}, 6144')
    e(f's_lshl_b32 s3, s{sPP}, 2')
    e(f's_add_u32 s3, s3, s{S_W}')
    e(f's_lshl_b32 s3, s3, 1')
    e(f's_mul_i32 s{sZ}, s3, {ZS}')
    e(f's_sub_u32 s3, 126, s3')
    e(f's_mul_i32 s{sZ+2}, s3, {ZS}')
    for k in (0, 2):
        e(f's_add_u32 s{sZ+k}, s{sZ+k}, s51')
        e(f's_lshl_b32 s{sZ+k}, s{sZ+k}, 10')
        e(f's_add_u32 s{sZ+k}, s{sZ+k}, {Z_OFF + 128*1024}')
        e(f's_add_u32 s{sZ+k+1}, s{sZ+k}, {ZS*1024}')
    e(f'v_lshrrev_b32 v{VT}, 6, v{V_L16}')
    e(f'v_mul_u32_u24 v{VD}, 1280, v{VT}')
    e(f'v_lshrrev_b32 v{VT+1}, 3, v{V_L16}')
    e(f'v_and_b32 v{VT+1}, 32, v{VT+1}')
    e(f'v_and_b32 v{VT+2}, 48, v{V_L16}')
    e(f'v_xor_b32 v{VT+2}, v{VT+2}, v{VT+1}')
    e(f'v_add_u32 v{VD}, v{VD}, v{VT+2}')
    e(f'v_lshlrev_b32 v{VT}, 6, v{VT}')
    e(f'v_bfe_u32 v{VT+2}, v{V_L16}, 4, 2')
    e(f'v_lshl_add_u32 v{VT}, v{VT+2}, 3, v{VT}')
    e(f's_and_b32 s3, s{sCT}, 1')
    e(f's_lshl_b32 s51, s3, 5')
    e(f'v_xor_b32 v{VT+1}, s51, v{VT+1}')
    e(f'v_add_u32 v{VT}, v{VT}, v{VT+1}')
    e(f's_lshl_b32 s3, s3, 11')
    e(f'v_xor_b32 v{VT+1}, 32, v{VT}')
    e(f'v_add_u32 v{VT+1}, s3, v{VT+1}')
    for k in range(2):
        e(f'v_add_u32 v{VT+2+k}, {WL[3]}, v{VT+k}')
        e(f'v_add_u32 v{VT+4+k}, {WL[0]}, v{VT+k}')
    return L + [mk(f's_mov_b32 s1, {C_PRE}')] + PPRE.issue()

def w_dma(sg):
    L = []; n = STEPS[sg]
    o = ldsobj(f'D{sg}', wl(sg), 24576)
    base = (sWR, sg) if sg < 4 else (sWL + 1, sg - 4)
    for i in range(6):
        if i % 2 == 0: L.append(mk(f's_add_u32 m0, s{sWL}, {wl(sg) + i*1024}'))
        L.append(mk(f's_add_u32 s54, s{base[0]}, {base[1]*128*1280 + (i & 1)*16*1280 + (i >> 1)*64 - (i & 1)*1024}'))
        if n == 2: L += [mk(f's_cmp_lt_u32 s{S_W}, 2'), mk(f's_cselect_b32 s54, s54, {OOB}')]
        L.append(mk(f'buffer_load_dwordx4 v{VD}, {srd(S_W2 if sg < 4 else S_WO)}, s54 offen offset:{(i & 1)*1024} lds', grp=f'dw{sg}', obj=o))
    return L
def z_loads(sg, rb):
    n = STEPS[sg]
    L = [mk(f's_add_u32 s55, s{sZ+rb}, {(sg if sg < 4 else sg - 4)*4096}')]
    for s4 in range(n):
        if sg == 3 and s4 == 1:
            L += [mk(f's_cmp_lt_u32 s{sKQ}, 2'), mk(f's_cselect_b32 s55, s55, {OOB}')]
        L.append(mk(f'buffer_load_dwordx4 {ar(zf(sg, rb, s4))}, v{V_L16}, {srd(S_WS)}, s55 offen offset:{s4*1024} sc1', grp='dz'))
    return L
def z_to_ctx():
    L = [mk(f's_mul_i32 s3, s{sKQ}, 14'), mk('s_min_u32 s3, s3, 41'), mk('s_add_u32 s3, s3, 128'), mk(f's_lshl_b32 s55, s{sKQ}, 5'),
         mk('s_sub_u32 s3, s3, s55'), mk('s_lshl_b32 s3, s3, 10')]
    return L + [mk(f's_sub_u32 s{sZ+rb}, s{sZ+rb}, s3') for rb in range(4)]
def tr_reads(sg, nb, buf):
    L = []
    for s4 in range(STEPS[sg]):
        for j2 in range(2):
            reg, rel = ((VT + 4, 0), (VT, 0), (VT, WL[2]), (VT + 2, 0))[sg % 4]
            L.append(mk(f'ds_read_b64_tr_b16 {vr(WF + buf*16 + s4*4 + j2*2, 2)}, v{reg + (nb & 1)} offset:{rel + s4*6144 + (nb >> 1)*2048 + j2*1024}', obj=f'D{sg}'))
    return L

def z0(): return [x for rb in range(4) for x in z_loads(0, rb)]

def gen(b, hooks):
    hk = lambda n: hooks.get(n, lambda b: None)(b)
    e = b.e
    hk('d0')
    if DONLY:
        for x in setup()[:-1] + w_dma(0) + z0(): b.add(x)
    e(f'v_mov_b32 v{XR}, s{attn.sFLAG}')
    e(f's_lshl_b32 s3, s{S_W}, 2')
    e(f's_add_u32 s3, s3, {FLAG_LDS}')
    e(f'v_mov_b32 v{XR+1}, s3')
    e(f'ds_write_b32 v{XR+1}, v{XR}')
    b.waitgrp('dw0')
    b.waitlds()
    e('s_barrier')
    e(f'v_mov_b32 v{XR+1}, {FLAG_LDS}')
    e(f'ds_read_b128 {vr(XR+2)}, v{XR+1}')
    for x in tr_reads(0, 0, 0): b.add(x)
    for rb in range(2):
        for x in z_loads(1, rb): b.add(x)
    e(f'v_or_b32 v{XR+2}, v{XR+2}, v{XR+3}')
    e(f'v_or3_b32 v{XR+2}, v{XR+2}, v{XR+4}, v{XR+5}')
    e(f'v_readfirstlane_b32 s3, v{XR+2}')
    e(f's_andn2_b32 s3, s3, s{attn.sREDO}')
    e(f's_cmp_lg_u32 s3, 0')
    e(f's_cbranch_scc1 L_redo')
    e(f's_lshl_b32 s1, s{sPP}, 8')
    e(f's_add_u32 s1, s1, {C_CTX}')
    pi = PCTX.issue()
    for x in pi[:-1]: b.add(x)
    hk('d1')
    seq = [(sg, nb) for sg in range(NS) for nb in range(5)]
    sl = Str(); g0 = {}; st0 = {}
    for i, (sg, nb) in enumerate(seq):
        k0 = len(sl); g0[(sg, nb)] = k0; st0.setdefault(sg, k0); buf = i & 1
        for rb in range(4):
            for s4 in range(STEPS[sg]):
                a = vr(acc(nb, rb))
                sl.add(f'{MF} {a}, {vr(WF + buf*16 + s4*4)}, {ar(zf(sg, rb, s4))}, {"0" if sg == 0 and s4 == 0 else a}')
        if i + 1 < len(seq):
            nsg, nnb = seq[i + 1]
            newst = nnb == 0 and nsg != sg
            if newst: barrier_at(sl, k0, [f'dw{nsg}'])
            R = tr_reads(nsg, nnb, buf ^ 1)
            if STEPS[sg] == 4 and (i == 0 or STEPS[seq[i-1][0]] == 4): sl.reads(R, k0, newst)
            else:
                for j, x in enumerate(R): sl.put(k0 + j, x)
    last = lambda sg: g0[(sg, 4)]
    PER = float(os.environ.get('DPER', '3.4'))
    k = sl.paced(w_dma(1) + z_loads(1, 2) + z_loads(1, 3), 1.0, 2.0)
    ks = int(os.environ.get('DSIG', '32'))
    sl.put(ks, waitgrp('ctx')); sl.put(ks, mk('s_barrier'))
    sl.ch(signal([mk(f's_lshl_b32 s53, s{S_P}, 8'), mk(f's_add_u32 s53, s53, {C_CTX}')], XR), ks)
    for sg in range(2, NS):
        k = sl.paced(w_dma(sg), max(k, last(sg - 4) + 2 if sg >= 4 else 0), PER)
        kw = sl.lastp
        pre = []
        if sg == 4:
            sl.raw(last(1) - 1, ([] if DONLY else PCTX.check()))
            pre = z_to_ctx(); k = max(k, last(1) + 8); sl.lastp = max(sl.lastp, last(1))
        for rb in range(4):
            k = sl.paced(pre + z_loads(sg, rb), max(k, (g0[(sg - 4, 4)] + STEPS[sg - 4]*(rb + 1) + 1) if sg >= 4 else 0), PER); pre = []
        if os.environ.get('DBG'): print('stage', sg, 'W done', kw, 'Z done', sl.lastp, 'stage starts', st0[sg])
    k = int(k)
    sl.put(st0[1] + 1, pi[-1])
    fin = []; f = lambda t: fin.append(mk(t))
    f(f's_lshl_b32 s51, s{sPP}, 2'); f(f's_add_u32 s51, s51, s{sKQ}'); f('s_lshl_b32 s51, s51, 1')
    f('s_sub_u32 s52, 124, s51'); f(f's_cmp_lt_u32 s{S_W}, 2'); f('s_cselect_b32 s51, s51, s52'); f(f's_add_u32 s51, s51, s{S_W}')
    f(f's_mul_i32 s51, s51, {16*1280}'); f(f's_mul_i32 s52, s{sCT}, 160'); f('s_add_u32 s51, s51, s52')
    f(f'v_bfe_u32 v{VX}, v{V_L16}, 4, 4'); f(f'v_mul_u32_u24 v{VX}, 1280, v{VX}'); f(f'v_lshrrev_b32 v{VE}, 8, v{V_L16}')
    f(f'v_lshl_add_u32 v{VX}, v{VE}, 3, v{VX}'); f(f'v_add_u32 v{VX}, s51, v{VX}')
    f(f's_lshl_b32 s{sPX}, s{sPP}, 3'); f(f's_add_u32 s{sPX}, s{sPX}, s{sCT}')
    f(f's_lshl_b32 s1, s{sPX}, 8'); f(f's_add_u32 s1, s1, {C_EX}')
    f(f's_lshl_b32 s{sPX+1}, s{sPX}, 2'); f(f's_add_u32 s51, s{sPX+1}, s{S_W}'); f('s_lshl_b32 s51, s51, 2'); f(f's_add_u32 s51, s51, s{sKQ}')
    f(f's_mul_i32 s51, s51, 10240'); f(f's_add_u32 s51, s51, {PX_OFF}')
    f(f's_cmp_eq_u32 s{S_W}, s{sKQ}'); f(f's_cselect_b32 s{sPX}, {OOB}, s51')
    f(f's_add_u32 s{sPX+1}, s{sPX+1}, s{sKQ}'); f(f's_mul_i32 s{sPX+1}, s{sPX+1}, {4*10240}'); f(f's_mul_i32 s51, s{S_W}, 2560')
    f(f's_add_u32 s{sPX+1}, s{sPX+1}, s51'); f(f's_add_u32 s{sPX+1}, s{sPX+1}, {PX_OFF}')
    f(f'v_lshrrev_b32 v{VE}, 1, v{V_L16}')
    kk = g0[(NS - 2, 0)]
    kk = max(kk, k); sl.raw(kk, fin)
    sl.ch([mk(f'buffer_load_dwordx2 {vr(XR + 2*nb, 2)}, v{VX}, {srd(S_X)}, 0 offen offset:{nb*32}') for nb in range(5)], max(k, kk + 1), 3)
    PS = 160
    def pstore(a2, rb):
        t = PS + (rb & 1)*4
        if a2 < 2:
            return cvt4(t, acc(2*a2, rb), acc(2*a2 + 1, rb)) + [mk(f's_add_u32 s52, s{sPX}, {rb*2560}'),
                    mk(f'buffer_store_dwordx4 {vr(t)}, v{V_L16}, {srd(S_WS)}, s52 offen offset:{a2*1024} sc1', grp='px')]
        return cvt4(t, acc(4, rb), acc(4, rb))[:2] + [mk(f's_add_u32 s52, s{sPX}, {rb*2560}'),
                mk(f'buffer_store_dwordx2 {vr(t, 2)}, v{VE}, {srd(S_WS)}, s52 offen offset:2048 sc1', grp='px')]
    kq = 0; left = []
    for a2 in range(2):
        for rb in range(4):
            if left: left += pstore(a2, rb); continue
            kq, left = sl.chain(pstore(a2, rb), max(kq + 1, g0[(NS - 1, 2*a2 + 1)] + 4*rb + 8), 2)
    left += [x for rb in range(4) for x in pstore(2, rb)]
    hooks.get('dsl', lambda *a: None)(sl, st0)
    sl.emit(b)
    hk('d2')
    for x in left: b.add(x)
    e(f's_cmp_eq_u32 s{S_W}, s{sKQ}')
    e('s_cbranch_scc0 L_d_notown')
    e(f'v_add_u32 v{VE+1}, {OWN_LDS}, v{V_L16}')
    for nb in range(5):
        for rb in range(4): e(f'ds_write_b128 v{VE+1}, {vr(acc(nb, rb))} offset:{(nb*4 + rb)*1024}')
    e('L_d_notown:')
    pe = PEX.issue()
    for x in pe[:-1]: b.add(x)
    T = 224
    for k in range(10):
        e(f'v_lshlrev_b32 v{T+2*k}, 16, v{XR+k}')
        e(f'v_and_b32 v{T+2*k+1}, 0xffff0000, v{XR+k}')
    b.waitall()
    e('s_barrier')
    for x in signal([mk('s_mov_b32 s53, s1')], XR): b.add(x)
    b.add(pe[-1])
    e(f's_lshl_b32 s3, s{S_W}, 10')
    e(f's_add_u32 s3, s3, {OWN_LDS}')
    e(f'v_add_u32 v{VE+1}, s3, v{V_L16}')
    R = 32
    for nb in range(5): e(f'ds_read_b128 {vr(R + nb*4)}, v{VE+1} offset:{nb*4096}')
    for j in range(1, 4):
        e(f's_add_u32 s3, s{sKQ}, {j}')
        e('s_and_b32 s3, s3, 3')
        e('s_mul_i32 s3, s3, 10240')
        e(f's_add_u32 s{50+j}, s3, s{sPX+1}')
    for x in PEX.check(): b.add(x)
    e('s_barrier')
    hk('d3')
    Q = 64
    for a2 in range(3):
        for j in range(1, 4):
            r = Q + (a2*3 + j - 1)*4
            if a2 < 2: e(f'buffer_load_dwordx4 {vr(r)}, v{V_L16}, {srd(S_WS)}, s{50+j} offen offset:{a2*1024} sc1')
            else: e(f'buffer_load_dwordx2 {vr(r, 2)}, v{VE}, {srd(S_WS)}, s{50+j} offen offset:2048 sc1')
    for k in range(10): e(f'v_pk_add_f32 {vr(R + 2*k, 2)}, {vr(R + 2*k, 2)}, {vr(T + 2*k, 2)}')
    U = 104
    for nb in range(5):
        for j in range(1, 4):
            r = Q + ((nb >> 1)*3 + j - 1)*4 + (nb & 1)*2
            for h in range(2):
                u = U + 4*(j - 1) + 2*h
                e(f'v_lshlrev_b32 v{u}, 16, v{r+h}')
                e(f'v_and_b32 v{u+1}, 0xffff0000, v{r+h}')
        for h in range(2):
            d = vr(R + nb*4 + 2*h, 2)
            e(f'v_pk_add_f32 {vr(U + 2*h, 2)}, {vr(U + 2*h, 2)}, {vr(U + 4 + 2*h, 2)}')
            e(f'v_pk_add_f32 {d}, {d}, {vr(U + 8 + 2*h, 2)}')
            e(f'v_pk_add_f32 {d}, {d}, {vr(U + 2*h, 2)}')
            e(f'v_cvt_pk_bf16_f32 v{XR+2*nb+h}, v{R+nb*4+2*h}, v{R+nb*4+2*h+1}')
        e(f'buffer_store_dwordx2 {vr(XR + 2*nb, 2)}, v{VX}, {srd(S_OUT)}, 0 offen offset:{nb*32}')
```

```python
import sys, os, copy
sys.path.insert(0, os.path.dirname(__file__))
from common import *
import common, ab, attn, phd

KNAME = NAME + '_kernel'
QDBG_OFF = 96 << 20

def build(stop, verbose, codebytes):
    hooks = {}
    stg = eval(os.environ.get('STG', '{}'))
    if common.DIAG:
        def hc(sl, base):
            for st in range(7):
                if f'A{st}' in stg: sl.put(base[st], stamp(stg[f'A{st}']))
        def hv(sl, base, B, endB, GL):
            if 'A7' in stg: sl.put(0, stamp(stg['A7']))
            for sg in range(5):
                if f'B{sg}' in stg: sl.put(B(sg), stamp(stg[f'B{sg}']))
            if 'Kp' in stg: sl.put(B(4) - 18, stamp(stg['Kp']))
            if 'Be' in stg: sl.put(len(sl) - 1, stamp(stg['Be']))
        for n in (1, 2):
            if f'P{n}' in stg: hooks[f'p{n}'] = (lambda n: lambda b: b.add(stamp(stg[f'P{n}'])))(n)
        hooks['common'] = hc; hooks['var_diag'] = hv
        for n in range(5):
            if f'C{n}' in stg: hooks[f'at{n}'] = (lambda n: lambda b: b.add(stamp(stg[f'C{n}'])))(n)
        for n in range(4):
            if f'D{n}' in stg: hooks[f'd{n}'] = (lambda n: lambda b: b.add(stamp(stg[f'D{n}'])))(n)
        def hd(sl, st0):
            for d in range(12):
                if f'd{d}' in stg: sl.put(st0[d], stamp(stg[f'd{d}']))
        hooks['dsl'] = hd
    def var_hook(tag):
        def f(sl, base, B, endB, GL):
            hooks.get('var_diag', lambda *a: None)(sl, base, B, endB, GL)
            return attn.b4_hook(sl, base, B, endB, GL, tag, hooks) if stop != 'B' else {}
        return dict(hooks, var=f)
    b0 = Block('common')
    stamp_entry(b0)
    entry(b0, [S_WS, S_X, S_CKV, S_WUK, S_WUV, S_WQ, S_W1, S_WO, S_W2, S_OUT], 'L_end', codebytes)
    if os.environ.get('DONLY'):
        b0.waitlds()
        b0.e(f'v_mov_b32 v0, {OOB}'); b0.e(f's_mov_b32 s{attn.sFLAG}, 0'); b0.e(f's_mov_b32 s{attn.sREDO}, 0')
        phd.gen(b0, hooks); stamp_exit(b0, 0); b0.e('L_redo:'); b0.e('L_end:'); b0.e('s_endpgm')
        check_binds([[b0]]); autowait([[b0]]); hazards([[b0]])
        return render([b0] + SPINS)
    img = ab.Img()
    ab.gen_common(b0, img, hooks)
    b0.e(f's_cmp_ge_u32 s{ab.S_HC}, 27')
    b0.e('s_cbranch_scc1 L_varN')
    bH = Block('varH'); ab.gen_var(bH, copy.deepcopy(img), True, 'H', var_hook('H'))
    bH.e('s_branch L_afterB')
    bN = Block('varN'); bN.e('L_varN:'); ab.gen_var(bN, copy.deepcopy(img), False, 'N', var_hook('N'))
    bj = Block('join'); bj.e('L_afterB:')
    if stop == 'D':
        def h1(b):
            for x in phd.setup(): b.add(x)
        def h2(b):
            c = phd.PPRE.check(); c[0].noauto = True
            b.e('s_waitcnt vmcnt(8)')
            for x in c: b.add(x)
        hooks['at_setup'] = h1; hooks['at_check'] = h2; hooks['d_early'] = lambda: (phd.w_dma(0), phd.z0())
    mid, tails, redo = ([], [[]], None) if stop == 'B' else attn.gen(hooks)
    bz = Block('rest')
    extra = []
    if stop == 'D':
        phd.gen(bz, hooks)
        extra = [redo]
    if stop == 'B':
        bz.e(f's_lshl_b32 s3, s2, 2'); bz.e(f's_add_u32 s3, s3, s{S_W}'); bz.e('s_lshl_b32 s3, s3, 14'); bz.e(f's_add_u32 s3, s3, {QDBG_OFF}')
        for rb in range(4):
            for ds in range(4):
                bz.e(f'buffer_store_dwordx4 {vr(ab.qreg(rb, ds))}, v{V_L16}, {srd(S_WS)}, s3 offen offset:{ds*1024}')
            bz.e('s_add_u32 s3, s3, 4096')
    stamp_exit(bz, 0)
    be = Block('end'); be.e('L_end:'); be.e('s_endpgm')
    paths = [[b0, bH, bj] + t + [bz] for t in tails] + [[b0, bN, bj] + tails[0] + [bz]]
    if extra: paths.append([redo] + tails[1] + [bz])
    check_binds(paths)
    autowait(paths)
    check_lds(paths)
    hazards(paths, verbose=verbose)
    return render([b0, bH, bN, bj] + mid + [bz, be] + extra + SPINS)

def main(out, stop, verbose=False):
    body = build(stop, verbose, int(os.environ.get('CODEBYTES', '40000')))
    txt = f'; @launch grid=(256,1,1) block=(256,1,1) lds=163840\n.amdgcn_target "amdgcn-amd-amdhsa--gfx950"\n.text\n'
    txt += kstart(KNAME) + body + '.section .rodata,"a"\n.p2align 6\n' + kdesc(KNAME)
    open(out, 'w').write(txt)

if __name__ == '__main__':
    common.DIAG = 'diag' in sys.argv; common.RT = 'rt' in sys.argv
    main(sys.argv[1], sys.argv[2], verbose='-v' in sys.argv)
```

```python
import os
from asmlib import *

NAME = 'parallel_sum__compressed_kv_cla__dense_activation_silu__prompt'
XN_OFF = 0
KV_OFF = 4 << 20
Z_OFF  = 40 << 20
WT_OFF = 64 << 20
WS_BYTES = 1 << 28
OOB = 0x7F000000
ZS = 182

S_WS, S_X, S_CKV, S_WUK, S_WUV, S_WQ, S_W1, S_WO, S_W2, S_OUT = 4, 8, 12, 16, 20, 24, 28, 32, 36, 40
S_DBG = 44
S_H, S_P, S_W = 48, 49, 50
S_T = 51
S_W8K, S_W4K = 66, 67
S_SX, S_SZ = 76, 80
CNT_OFF = 72 << 20
C_KV, C_PRE, C_CTX, C_EX = CNT_OFF, CNT_OFF + 32*256, CNT_OFF + 40*256, CNT_OFF + 48*256
N_CNT = 112
def srd(n): return f's[{n}:{n+3}]'
SIZES = {S_WS: WS_BYTES, S_X: 2048*640*2, S_CKV: 2048*512*2, S_WUK: 512*4096*2, S_WUV: 512*4096*2, S_WQ: 640*4096*2,
         S_W1: 640*1728*2, S_WO: 4096*640*2, S_W2: 1728*640*2, S_OUT: 2048*640*2}
KARG = {S_X: 0, S_CKV: 8, S_WQ: 16, S_WUK: 24, S_WUV: 32, S_WO: 40, S_W1: 56, S_W2: 64, S_OUT: 72, S_WS: 88}
V_L16 = 1

def vr(a, n=4): return f'v[{a}:{a+n-1}]'
def ar(a, n=4): return f'a[{a}:{a+n-1}]'
MF = 'v_mfma_f32_16x16x32_bf16'

def entry(b, srds, endlabel, codebytes):
    b.e(f's_cmp_ge_u32 s2, 256')
    b.e(f's_cbranch_scc1 {endlabel}')
    for s in srds: b.e(f's_load_dwordx2 s[{s}:{s+1}], s[0:1], {KARG[s]}')
    b.e(f's_load_dwordx2 s[{S_DBG}:{S_DBG+1}], s[0:1], 80')
    b.e(f's_getpc_b64 s[52:53]')
    b.e(f's_lshr_b32 s3, s2, 3')
    b.e(f's_lshl_b32 s54, s3, 12')
    b.e(f's_min_u32 s54, s54, {max(0, ((codebytes - 256) // 4096) * 4096 - 4096)}')
    b.e(f'v_lshl_add_u32 v6, v0, 4, s54')
    b.e(f'global_load_dwordx4 v[60:63], v6, s[52:53]')
    b.e(f's_and_b32 s{S_H}, s2, 7')
    b.e(f's_lshl_b32 s{S_H}, s{S_H}, 2')
    b.e(f's_and_b32 s{S_T}, s3, 3')
    b.e(f's_add_u32 s{S_H}, s{S_H}, s{S_T}')
    b.e(f's_lshr_b32 s{S_P}, s3, 2')
    b.e(f'v_lshrrev_b32 v6, 6, v0')
    b.e(f'v_and_b32 v0, 63, v0')
    b.e(f'v_readfirstlane_b32 s{S_W}, v6')
    b.e(f'v_lshlrev_b32 v{V_L16}, 4, v0')
    for s in srds:
        b.e(f's_mov_b32 s{s+2}, {SIZES[s]}')
        b.e(f's_mov_b32 s{s+3}, 0x20000')
    b.e(f's_mov_b32 s{S_DBG+2}, 256')
    b.e(f's_mov_b32 s{S_DBG+3}, 0x20000')
    b.e(f's_lshl_b32 s{S_W8K}, s{S_W}, 13')
    b.e(f's_lshl_b32 s{S_W4K}, s{S_W}, 12')

V_SIG = 0
SPINS = []
def signal(soff_ins, tmp, val='1', sr=None):
    return list(soff_ins) + [mk(f'v_mov_b32 v{tmp}, {val}'), mk(f'buffer_atomic_add v{tmp}, v{V_SIG}, {srd(sr or S_WS)}, s53 offen sc1', grp='sig')]
class Poll:
    def __init__(self, name, sr, n, stride, count, regs, mask=None, sleep=16):
        self.name, self.sr, self.n, self.stride, self.count, self.mask, self.sleep = name, sr, n, stride, count, mask, sleep
        self.va, self.vt, self.vd = regs
    def load(self): return mk(f'buffer_load_dword v{self.vd}, v{self.va}, {srd(self.sr)}, s1 offen sc1', grp='poll')
    def issue(self):
        sh = {4: ('lshrrev', 2), 256: ('lshlrev', 4)}[self.stride]
        return [mk(f'v_lshl_add_u32 v{self.vt}, s{S_W}, 10, v{V_L16}'), mk(f'v_cmp_gt_u32 vcc, {16*self.n}, v{self.vt}'),
                mk(f'v_{sh[0]}_b32 v{self.va}, {sh[1]}, v{V_L16}'), mk(f'v_mov_b32 v{self.vd}, {OOB}'), mk(f'v_mov_b32 v{self.vt}, {self.count}'),
                mk(f'v_cndmask_b32 v{self.va}, v{self.vd}, v{self.va}, vcc'), mk(f'v_cndmask_b32 v{self.vt}, 0, v{self.vt}, vcc'), self.load()]
    def test(self):
        L = [mk(f'v_and_b32 v{self.vd}, {self.mask}, v{self.vd}')] if self.mask else []
        return L + [mk(f'v_cmp_ge_u32 vcc, v{self.vd}, v{self.vt}'), mk('s_nop 3'), mk('s_cmp_eq_u64 vcc, -1')]
    def check(self, tag=''):
        name = self.name + tag
        sp = Block('spin_' + name)
        sp.e(f'L_spin_{name}:')
        sp.e(f's_mov_b32 s0, 200000')
        sp.e(f'L_spin_{name}_l:')
        sp.e(f's_sleep {self.sleep}')
        sp.add(self.load())
        sp.e(f's_waitcnt vmcnt(0)')
        for x in self.test(): sp.add(x)
        sp.e(f's_cbranch_scc1 L_back_{name}')
        sp.e(f's_sub_u32 s0, s0, 1')
        sp.e(f's_cmp_lg_u32 s0, 0')
        sp.e(f's_cbranch_scc1 L_spin_{name}_l')
        sp.e(f's_branch L_back_{name}')
        SPINS.append(sp)
        return self.test() + [mk(f's_cbranch_scc0 L_spin_{name}'), mk(f'L_back_{name}:')]

def header(launches):
    L = [f'; @launch kernel={k} grid=(256,1,1) block=(256,1,1) lds={lds}' for k, lds in launches]
    L.append('.amdgcn_target "amdgcn-amd-amdhsa--gfx950"')
    L.append('.text')
    return '\n'.join(L) + '\n'
def kstart(k): return f'.globl {k}\n.p2align 8\n.type {k},@function\n{k}:\n'
def kdesc(k):
    return f'''.amdhsa_kernel {k}
  .amdhsa_next_free_vgpr 512
  .amdhsa_next_free_sgpr 102
  .amdhsa_accum_offset 256
  .amdhsa_group_segment_fixed_size 0
  .amdhsa_kernarg_size 96
  .amdhsa_user_sgpr_count 2
  .amdhsa_user_sgpr_kernarg_segment_ptr 1
  .amdhsa_system_sgpr_workgroup_id_x 1
  .amdhsa_float_denorm_mode_32 3
.end_amdhsa_kernel
'''

DIAG = False
STAMP_OFF = 80 << 20
RT = False
def stamp(n):
    return mk(f's_mem{"real" if RT else ""}time s[{84+2*n}:{85+2*n}]')
def stamp_entry(b):
    if DIAG: b.e('s_memrealtime s[98:99]'); b.add(stamp(0))
def stamp_exit(b, kidx):
    if not DIAG: return
    b.e('s_waitcnt vmcnt(0)')
    b.add(stamp(6))
    b.e('s_memrealtime s[100:101]')
    b.e('s_waitcnt lgkmcnt(0)')
    b.e(f's_lshl_b32 s3, s2, 2')
    b.e(f's_add_u32 s3, s3, s{S_W}')
    b.e(f's_lshl_b32 s3, s3, 6')
    b.e(f's_add_u32 s3, s3, {STAMP_OFF + kidx*65536}')
    if os.environ.get('DBGOUT'):
        for wg, base in ((100, 0), (13, 32)):
            b.e(f's_lshl_b32 s51, s2, 2'); b.e(f's_add_u32 s51, s51, s{S_W}')
            b.e(f's_cmp_eq_u32 s51, {wg*4}'); b.e(f's_cselect_b32 s51, {base}, {OOB >> 8}')
            for n in range(1, 7):
                b.e(f's_sub_u32 s52, s{84+2*n}, s84'); b.e('v_mov_b32 v2, s52'); b.e('v_mov_b32 v3, 0')
                b.e(f'buffer_store_dword v2, v3, {srd(S_DBG)}, s51 offen offset:{4*n}')
    for n in range(9):
        b.e(f'v_mov_b32 v2, s{84+2*n}')
        b.e(f'v_mov_b32 v3, 0')
        b.e(f'buffer_store_dword v2, v3, {srd(S_WS)}, s3 offen offset:{4*n}')
```
